```python
import torch

def _softmax(x, axis=-1):
    return torch.softmax(x, dim=axis)
def _gelu(x):
    return torch.nn.functional.gelu(x, approximate="tanh")
def _silu(x):
    return torch.nn.functional.silu(x)
def _sigmoid(x):
    return torch.sigmoid(x)
def _layernorm(x, axis=-1, eps=1e-5):
    m = x.mean(dim=axis, keepdim=True)
    v = x.var(dim=axis, keepdim=True, unbiased=False)
    return (x - m) / torch.sqrt(v + eps)
def _scatter_add(tgt, idx, src, axis=0):
    return tgt.clone().index_add_(axis, idx, src)
def _segment_sum(src, seg, n):
    out = torch.zeros((n,) + src.shape[1:], dtype=src.dtype)
    return out.index_add_(0, seg, src)
def _pad(x, pw):
    flat = tuple(v for pair in reversed(pw) for v in pair)
    return torch.nn.functional.pad(x, flat)

kernel_name = 'standalone__fused_io_aware_attn__prompt'

def setup_inputs():

    _w = (lambda a: (lambda t: t.to(torch.bfloat16) if t.is_floating_point() else t)(torch.as_tensor(a)))
    B, H, S = 2, 16, 2048
    Dh = max(1, 448 // 16)
    return {
        "q": _w((lambda *s: torch.randn(*s, dtype=torch.bfloat16) * 0.8)(B, H, S, Dh)),
        "k": _w((lambda *s: torch.randn(*s, dtype=torch.bfloat16) * 0.8)(B, H, S, Dh)),
        "v": _w((lambda *s: torch.randn(*s, dtype=torch.bfloat16) * 0.05)(B, H, S, Dh)),
    }

def reference(q, k, v):
    scale = q.shape[-1] ** -0.5
    s = torch.einsum('bhqd,bhkd->bhqk', q, k) * scale
    p = _softmax(s, axis=-1)
    return torch.einsum('bhqk,bhkd->bhqd', p, v)
```

```python
import sys
NAME = "standalone__fused_io_aware_attn__prompt"
HEADER = open("cdna_kernels/%s.s.ref" % NAME).read().split("; Override launch")[0]

CFG = dict(prio="ph", stamp=False)
for a in sys.argv[2:]:
    k, v = a.split("=")
    CFG[k] = {"True": True, "False": False, "None": None}.get(v, v)

BUFSZ = 3670016
HEADB = 114688
PIECE = 7168
SLOT = 4 * PIECE
NSLOT = 3
ONES = NSLOT * SLOT
XCH = ONES + 8192
LDS = XCH + 8 * 4096
CBITS = 0x3E8B9846
import struct, math
c = (28 ** -0.5) * math.log2(math.e)
CBITS = struct.unpack("<I", struct.pack("<f", c))[0]

SA = [2, 18]; SB = [34, 50]; OA = 66; OB = 82
QA = 98; QB = 106
KF = [114, 122]; VF = [130, 138]
vK = 146; vV = 147; vK0 = 148; vV0 = 149; vOne = 150; vIdx = 151; vDma = 152
vLane = 153; vH = 154; vQoff = 155; vX = 156; vOut = 157; vT = 158
NVGPR = 168
sQ = 4; sKp = 6; sVp = 8; sO = 10
rQ = 12; rD = 16; rO = 20; rK = 24; rV = 28
sW = 32; sHalf = 33; sHead = 34; sI = 35; sCur = 36; sNxt = 37; sNN = 38; sDmaL = 39; sStg = 40
sC = 42
sT = 44
sQrow = 52
sStamp = 56

out = []
def e(s): out.append("    " + s)
def L(s): out.append(s + ":")
def cm(s): out.append("    ; " + s)

def qk(S, Kf, Q):
    return [f"v_mfma_f32_32x32x16_bf16 v[{S}:{S+15}], v[{Kf}:{Kf+3}], v[{Q}:{Q+3}], 0",
            f"v_mfma_f32_32x32x16_bf16 v[{S}:{S+15}], v[{Kf+4}:{Kf+7}], v[{Q+4}:{Q+7}], v[{S}:{S+15}]"]
def pv(O, Vf, S):
    return [f"v_smfmac_f32_32x32x32_bf16 v[{O}:{O+15}], v[{Vf}:{Vf+3}], v[{S}:{S+7}], v{vIdx}",
            f"v_smfmac_f32_32x32x32_bf16 v[{O}:{O+15}], v[{Vf+4}:{Vf+7}], v[{S+8}:{S+15}], v{vIdx}"]
def ex(S): return [f"v_exp_f32 v{S+i}, v{S+i}" for i in range(16)]
def kread(dst, tile, addr=vK): return [f"ds_read_b64 v[{dst+2*i}:{dst+2*i+1}], v{addr} offset:{tile*1792+8*i}" for i in range(4)]
def vread(dst, tile, addr=vV):
    return [f"ds_read_b64_tr_b16 v[{dst+2*i}:{dst+2*i+1}], v{addr} offset:{tile*1792+(i>>1)*896+(i&1)*224}" for i in range(4)]
nstamp = [0]
def stamp():
    if CFG["stamp"]:
        k = nstamp[0]; nstamp[0] += 1
        e(f"s_memtime s[{sStamp+2*k}:{sStamp+2*k+1}]")

out.append(HEADER.rstrip())
out.append(f"; @launch grid=(256,1,1) block=(512,1,1) lds={LDS}")
out.append('.amdgcn_target "amdgcn-amd-amdhsa--gfx950"')
out.append(".text")
out.append(f".globl {NAME}_kernel")
out.append(".p2align 8")
out.append(f".type {NAME}_kernel,@function")
L(f"{NAME}_kernel")
stamp()
e("s_cmp_ge_u32 s2, 256")
e("s_cbranch_scc1 L_end")
e(f"s_load_dwordx8 s[4:11], s[0:1], 0")
if CFG["stamp"]:
    e(f"s_load_dwordx2 s[54:55], s[0:1], 32")
    e(f"s_memrealtime s[72:73]")
cm("wave id, lane decomposition")
e(f"v_lshrrev_b32 v1, 6, v0")
e(f"v_and_b32 v{vLane}, 63, v0")
e(f"v_readfirstlane_b32 s{sW}, v1")
e(f"v_lshrrev_b32 v{vH}, 5, v{vLane}")
e(f"v_and_b32 v{vT}, 31, v{vLane}")
cm("head = (b&7)*4 + ((b>>3)&3) ; qblk = b>>5")
e(f"s_and_b32 s{sT}, s2, 7")
e(f"s_lshl_b32 s{sT}, s{sT}, 2")
e(f"s_bfe_u32 s{sT+1}, s2, 0x20003")
e(f"s_add_u32 s{sHead}, s{sT}, s{sT+1}")
e(f"s_mul_i32 s{sHead}, s{sHead}, {HEADB}")
e(f"s_lshr_b32 s{sT}, s2, 5")
e(f"s_lshr_b32 s{sHalf}, s{sW}, 2")
e(f"s_and_b32 s{sT+1}, s{sW}, 3")
e(f"s_lshl_b32 s{sT}, s{sT}, 2")
e(f"s_add_u32 s{sT}, s{sT}, s{sT+1}")
e(f"s_lshl_b32 s{sT}, s{sT}, 1")
cm("tile A = 2*(qblk*4+g) + half ; tile B = the other one")
e(f"s_add_u32 s{sT+1}, s{sT}, s{sHalf}")
e(f"s_mul_i32 s{sT+1}, s{sT+1}, 1792")
e(f"s_add_u32 s{sT+1}, s{sT+1}, s{sHead}")
e(f"s_xor_b32 s{sT+2}, s{sHalf}, 1")
e(f"s_add_u32 s{sT+2}, s{sT}, s{sT+2}")
e(f"s_mul_i32 s{sT+2}, s{sT+2}, 1792")
e(f"s_add_u32 s{sQrow}, s{sT+2}, s{sHead}")
cm("vQoff = rho*56 + 24h")
e(f"v_mul_u32_u24 v{vQoff}, 56, v{vT}")
e(f"v_mul_u32_u24 v{vT+1}, 24, v{vH}")
e(f"v_add_u32 v{vQoff}, v{vQoff}, v{vT+1}")
cm("DMA lane offset: head + (p>>1)*57344 + (w&1)*3072 + lane*16 ; LDS piece offset p*7168 + (w&1)*3072")
e(f"s_mul_i32 s{sT+3}, s{sHalf}, 57344")
e(f"s_and_b32 s{sT+4}, s{sW}, 1")
e(f"s_mul_i32 s{sT+4}, s{sT+4}, 3072")
e(f"s_add_u32 s{sT+3}, s{sT+3}, s{sT+4}")
e(f"s_add_u32 s{sT+3}, s{sT+3}, s{sHead}")
e(f"v_lshlrev_b32 v{vX}, 4, v{vLane}")
e(f"v_add_u32 v{vDma}, s{sT+3}, v{vX}")
e(f"s_lshr_b32 s{sT+5}, s{sW}, 1")
e(f"s_mul_i32 s{sDmaL}, s{sT+5}, {PIECE}")
e(f"s_add_u32 s{sDmaL}, s{sDmaL}, s{sT+4}")
e(f"s_bitcmp1_b32 s{sW}, 1")
e(f"s_mov_b32 m0, s{sDmaL}")
e(f"s_waitcnt lgkmcnt(0)")
stamp()
e(f"s_cselect_b32 s{rD}, s{sVp}, s{sKp}")
e(f"s_cselect_b32 s{rD+1}, s{sVp+1}, s{sKp+1}")
e(f"s_mov_b32 s{rD+2}, {BUFSZ}")
e(f"s_mov_b32 s{rD+3}, 0x00020000")
e(f"s_mov_b32 s{rQ}, s{sQ}")
e(f"s_mov_b32 s{rQ+1}, s{sQ+1}")
e(f"s_mov_b32 s{rQ+2}, {BUFSZ}")
e(f"s_mov_b32 s{rQ+3}, 0x00020000")
e(f"buffer_load_dwordx4 v[{QA}:{QA+3}], v{vQoff}, s[{rQ}:{rQ+3}], s{sT+1} offen")
e(f"buffer_load_dwordx4 v[{QA+4}:{QA+7}], v{vQoff}, s[{rQ}:{rQ+3}], s{sT+1} offen offset:16")
for i in range(4):
    e(f"buffer_load_dwordx4 v{vDma}, s[{rD}:{rD+3}], 0 offen offset:{1024*i} lds")
e(f"s_add_u32 s{sT}, s{sDmaL}, {SLOT}")
e(f"s_mov_b32 m0, s{sT}")
e(f"s_mov_b32 s{sStg}, {PIECE}")
for i in range(4):
    e(f"buffer_load_dwordx4 v{vDma}, s[{rD}:{rD+3}], s{sStg} offen offset:{1024*i} lds")
cm("remaining setup in the shadow of the loads")
e(f"s_mov_b32 s{rO}, s{sO}")
e(f"s_mov_b32 s{rO+1}, s{sO+1}")
e(f"s_mov_b32 s{rO+2}, {BUFSZ}")
e(f"s_mov_b32 s{rO+3}, 0x00020000")
e(f"s_mov_b32 s{sC}, {hex(CBITS)}")
e(f"s_mov_b32 s{sC+1}, {hex(CBITS)}")
cm("ones region: 512 threads x 16 B")
e(f"v_mov_b32 v{vT+4}, 0x3f803f80")
e(f"v_mov_b32 v{vT+5}, 0x3f803f80")
e(f"v_mov_b32 v{vT+6}, 0x3f803f80")
e(f"v_mov_b32 v{vT+7}, 0x3f803f80")
e(f"v_lshlrev_b32 v{vT+1}, 4, v0")
e(f"v_add_u32 v{vT+1}, {ONES}, v{vT+1}")
e(f"ds_write_b128 v{vT+1}, v[{vT+4}:{vT+7}]")
cm("K read base")
e(f"s_mul_i32 s{sT}, s{sHalf}, {2*PIECE}")
e(f"v_add_u32 v{vK0}, s{sT}, v{vQoff}")
cm("V read base: half*14336 + 7168 + (8h+r)*56 + dchunk*8")
e(f"v_bfe_u32 v{vT+1}, v{vLane}, 2, 2")
e(f"v_lshl_add_u32 v{vT+1}, v{vH}, 3, v{vT+1}")
e(f"v_mul_u32_u24 v{vT+1}, 56, v{vT+1}")
e(f"v_and_b32 v{vT+2}, 1, v{vLane}")
e(f"v_lshlrev_b32 v{vT+2}, 2, v{vT+2}")
e(f"v_bfe_u32 v{vT+3}, v{vLane}, 4, 1")
e(f"v_lshl_add_u32 v{vT+2}, v{vT+3}, 1, v{vT+2}")
e(f"v_bfe_u32 v{vT+3}, v{vLane}, 1, 1")
e(f"v_add_u32 v{vT+2}, v{vT+2}, v{vT+3}")
e(f"v_lshl_add_u32 v{vT+1}, v{vT+2}, 3, v{vT+1}")
e(f"v_mov_b32 v{vT+8}, v{vT+1}")
e(f"s_add_u32 s{sT}, s{sT}, {PIECE}")
e(f"v_add_u32 v{vV0}, s{sT}, v{vT+1}")
e(f"v_cmp_ne_u32 vcc, 7, v{vT+2}")
e(f"v_mul_u32_u24 v{vT+3}, 64, v{vH}")
e(f"v_sub_u32 v{vT+3}, {ONES+224}, v{vT+3}")
e(f"v_mov_b32 v{vT+9}, v{vT+3}")
e(f"v_cndmask_b32 v{vV0}, v{vT+3}, v{vV0}, vcc")
e(f"v_cndmask_b32 v{vOne}, 0, 1, vcc")
e(f"v_mov_b32 v{vK}, v{vK0}")
e(f"v_mov_b32 v{vV}, v{vV0}")
e(f"v_mov_b32 v{vIdx}, 0xdddddddd")
cm("output lane offset: tile B rows + ql*56 + 32h")
e(f"v_lshl_add_u32 v{vOut}, v{vH}, 3, v{vQoff}")
e(f"v_add_u32 v{vOut}, s{sQrow}, v{vOut}")
for r in list(range(OA, OA+32)) + list(range(SB[1], SB[1]+16)) + list(range(VF[1], VF[1]+8)):
    e(f"v_mov_b32 v{r}, 0")
cm("exchange addresses: mine (write) in vX, partner (read) in vT+2")
e(f"s_lshl_b32 s{sT}, s{sW}, 12")
e(f"s_add_u32 s{sT}, s{sT}, {XCH}")
e(f"s_xor_b32 s{sT+1}, s{sW}, 4")
e(f"s_lshl_b32 s{sT+1}, s{sT+1}, 12")
e(f"s_add_u32 s{sT+6}, s{sT+1}, {XCH}")
e(f"v_add_u32 v1, s{sT+6}, v{vX}")
e(f"v_add_u32 v{vX}, s{sT}, v{vX}")
cm("per-lane scale for the duplicated dims (zero for h=1)")
e(f"v_cmp_eq_u32 vcc, 0, v{vH}")
e(f"v_mov_b32 v{vT+2}, s{sC}")
e(f"s_mov_b32 s{sI}, 0")
e(f"v_cndmask_b32 v{vT+2}, 0, v{vT+2}, vcc")
e(f"s_mov_b32 s{sCur}, 0")
e(f"v_mov_b32 v{vT+3}, v{vT+2}")
e(f"s_mov_b32 s{sNxt}, {SLOT}")
e(f"s_mov_b32 s{sNN}, {2*SLOT}")
e(f"s_waitcnt vmcnt(8)")
stamp()
cm("Q prep: bf16 -> f32, * scale*log2(e), -> bf16")
for i in range(8):
    t = vT + 4 + 2 * (i & 1)
    e(f"v_lshlrev_b32 v{t}, 16, v{QA+i}")
    e(f"v_and_b32 v{t+1}, 0xffff0000, v{QA+i}")
    if i < 2:
        e(f"v_pk_mul_f32 v[{t}:{t+1}], v[{t}:{t+1}], v[{vT+2}:{vT+3}]")
    else:
        e(f"v_pk_mul_f32 v[{t}:{t+1}], v[{t}:{t+1}], s[{sC}:{sC+1}]")
    e(f"v_cvt_pk_bf16_f32 v{QA+i}, v{t}, v{t+1}")
e(f"ds_write_b128 v{vX}, v[{QA}:{QA+3}]")
e(f"ds_write_b128 v{vX}, v[{QA+4}:{QA+7}] offset:1024")
e(f"s_waitcnt vmcnt(4) lgkmcnt(0)")
stamp()
e(f"s_barrier")
stamp()
for s in kread(KF[0], 0): e(s)
e(f"ds_read_b128 v[{QB}:{QB+3}], v1")
e(f"ds_read_b128 v[{QB+4}:{QB+7}], v1 offset:1024")
for s in kread(KF[1], 1): e(s)
for s in vread(VF[0], 0): e(s)
e(f"s_waitcnt lgkmcnt(10)")
q = qk(SA[0], KF[0], QA)
e(q[0]); e(q[1])
e(f"s_waitcnt lgkmcnt(8)")
q = qk(SB[0], KF[0], QB)
e(q[0]); e(q[1])
e("s_nop 7")
e("s_nop 1")
out.append(".p2align 6")
L("L_loop")
for t in range(4):
    p = t & 1
    for ph in (0, 1):
        if ph == 0:
            E = ex(SA[p]); P = pv(OB, VF[1-p], SB[1-p]); Q = qk(SA[1-p], KF[1-p], QA)
            rd = kread(KF[p], (t + 2) & 3)
        else:
            E = ex(SB[p]); P = pv(OA, VF[p], SA[p]); Q = qk(SB[1-p], KF[1-p], QB)
            rd = vread(VF[1-p], (t + 1) & 3)
        cm(f"tile {t} phase {'AB'[ph]}")
        if CFG["prio"] == "ph": e(f"s_setprio {1-ph}")
        if t == 2 and ph == 0:
            e("s_waitcnt vmcnt(0)")
            e("s_barrier")
            e(f"v_add_u32 v{vK}, s{sNxt}, v{vK0}")
            e(f"s_cmp_ge_u32 s{sI}, 6")
            e("s_cbranch_scc1 L_nodma")
            e(f"s_add_u32 s{sT}, s{sDmaL}, s{sNN}")
            e(f"s_mov_b32 m0, s{sT}")
            e(f"s_add_u32 s{sStg}, s{sStg}, {PIECE}")
            for i in range(4):
                e(f"buffer_load_dwordx4 v{vDma}, s[{rD}:{rD+3}], s{sStg} offen offset:{1024*i} lds")
            L("L_nodma")
        if t == 3 and ph == 1:
            e(f"v_mad_u32_u24 v{vV}, s{sNxt}, v{vOne}, v{vV0}")
        e("s_waitcnt lgkmcnt(4)")
        M = [P[0], Q[0], P[1], Q[1]]
        if ph == 1:
            pass
        for g4 in range(4):
            e(M[g4]); e(rd[g4])
            for s in E[4*g4:4*g4+4]: e(s)
cm("rotate slots")
e(f"s_mov_b32 s{sT}, s{sCur}")
e(f"s_mov_b32 s{sCur}, s{sNxt}")
e(f"s_mov_b32 s{sNxt}, s{sNN}")
e(f"s_mov_b32 s{sNN}, s{sT}")
e(f"s_add_u32 s{sI}, s{sI}, 1")
e(f"s_cmp_lt_u32 s{sI}, 8")
e("s_cbranch_scc1 L_loop")
stamp()
cm("epilogue: last PV_B (tile 31, parity 1), exchange OA")
P = pv(OB, VF[1], SB[1])
e(P[0])
e("s_setprio 0")
e(P[1])
cm("OA's last SMFMAC was issued >= 12 instructions ago")
for i in range(4):
    e(f"ds_write_b128 v{vX}, v[{OA+4*i}:{OA+4*i+3}] offset:{1024*i}")
e("s_waitcnt lgkmcnt(0)")
e("s_barrier")
for i in range(4):
    e(f"ds_read_b128 v[{SA[0]+4*i}:{SA[0]+4*i+3}], v1 offset:{1024*i}")
e("s_nop 3")
for i in range(4):
    e(f"s_waitcnt lgkmcnt({3-i})")
    for j in range(2):
        r = 4*i + 2*j
        e(f"v_pk_add_f32 v[{OB+r}:{OB+r+1}], v[{OB+r}:{OB+r+1}], v[{SA[0]+r}:{SA[0]+r+1}]")
cm("row sum l -> all lanes")
e(f"v_mov_b32 v{vT}, v{OB+12}")
e(f"v_mov_b32 v{vT+1}, v{OB+12}")
cm("finite check: sum of all accumulators")
e(f"v_pk_add_f32 v[{vT+2}:{vT+3}], v[{OB}:{OB+1}], v[{OB+2}:{OB+3}]")
for r in range(4, 16, 2):
    e(f"v_pk_add_f32 v[{vT+2}:{vT+3}], v[{vT+2}:{vT+3}], v[{OB+r}:{OB+r+1}]")
    if r == 6: e(f"v_permlane32_swap_b32 v{vT}, v{vT+1}")
e(f"v_add_f32 v{vT+2}, v{vT+2}, v{vT+3}")
e(f"s_mov_b32 s{sT}, 0x30800000")
e(f"s_mov_b32 s{sT+1}, 0x6c800000")
e(f"v_cmp_nle_f32 vcc, s{sT}, v{vT+1}")
e(f"v_cmp_nge_f32 s[{sT+2}:{sT+3}], s{sT+1}, v{vT+1}")
e(f"s_mov_b32 s{sT+1}, 0x207")
e(f"v_cmp_class_f32 s[{sT+4}:{sT+5}], v{vT+2}, s{sT+1}")
e("s_nop 0")
e(f"s_or_b64 vcc, vcc, s[{sT+2}:{sT+3}]")
e(f"s_or_b64 vcc, vcc, s[{sT+4}:{sT+5}]")
e("s_cbranch_vccnz L_slow")
L("L_fin")
e(f"v_rcp_f32 v{vT+2}, v{vT+1}")
e("s_nop 0")
e(f"v_mov_b32 v{vT+3}, v{vT+2}")
for r in range(0, 16, 2):
    e(f"v_pk_mul_f32 v[{OB+r}:{OB+r+1}], v[{OB+r}:{OB+r+1}], v[{vT+2}:{vT+3}]")
for r in range(0, 16, 2):
    e(f"v_cvt_pk_bf16_f32 v{SA[1]+r//2}, v{OB+r}, v{OB+r+1}")
e(f"buffer_store_dwordx4 v[{SA[1]}:{SA[1]+3}], v{vOut}, s[{rO}:{rO+3}], 0 offen")
e(f"buffer_store_dwordx2 v[{SA[1]+4}:{SA[1]+5}], v{vOut}, s[{rO}:{rO+3}], 0 offen offset:16")
e("s_mov_b32 exec_hi, 0")
e(f"buffer_store_dwordx2 v[{SA[1]+6}:{SA[1]+7}], v{vOut}, s[{rO}:{rO+3}], 0 offen offset:24")
if CFG["stamp"]:
    stamp()
    e("s_memrealtime s[74:75]")
    e("s_waitcnt vmcnt(0)")
    stamp()
    e("s_waitcnt lgkmcnt(0)")
    wg = int(CFG.get("swg", 0)); wv = int(CFG.get("swave", 0))
    e(f"s_cmp_eq_u32 s2, {wg}")
    e("s_cbranch_scc0 L_end")
    e(f"s_cmp_eq_u32 s{sW}, {wv}")
    e("s_cbranch_scc0 L_end")
    e("s_mov_b32 s76, s54")
    e("s_mov_b32 s77, s55")
    e("s_mov_b32 s78, 256")
    e("s_mov_b32 s79, 0x00020000")
    e("s_mov_b64 exec, 1")
    n = nstamp[0]
    for k in range(1, n):
        e(f"s_sub_u32 s{sT}, s{sStamp+2*k}, s{sStamp}")
        e(f"v_mov_b32 v2, s{sT}")
        e(f"v_mov_b32 v3, {4*(k-1)}")
        e("buffer_store_dword v2, v3, s[76:79], 0 offen")
        e("s_nop 1")
    e(f"s_sub_u32 s{sT}, s74, s72")
    e(f"v_mov_b32 v2, s{sT}")
    e(f"v_mov_b32 v3, {4*(n-1)}")
    e("buffer_store_dword v2, v3, s[76:79], 0 offen")
L("L_end")
e("s_endpgm")

cm("fallback: exact online-max softmax for this wave's 32 queries (tile B), all 2048 keys")
L("L_slow")
QR = QA; S = SA[0]; vM = vT; vMn = vT + 1; vAl = vT + 2; vKo = vT + 4; vVo = vT + 5; vVa = vT + 6
e(f"s_mov_b32 s{rK}, s{sKp}")
e(f"s_mov_b32 s{rK+1}, s{sKp+1}")
e(f"s_mov_b32 s{rK+2}, {BUFSZ}")
e(f"s_mov_b32 s{rK+3}, 0x00020000")
e(f"s_mov_b32 s{rV}, s{sVp}")
e(f"s_mov_b32 s{rV+1}, s{sVp+1}")
e(f"s_mov_b32 s{rV+2}, {BUFSZ}")
e(f"s_mov_b32 s{rV+3}, 0x00020000")
e(f"buffer_load_dwordx4 v[{QR}:{QR+3}], v{vQoff}, s[{rQ}:{rQ+3}], s{sQrow} offen")
e(f"buffer_load_dwordx4 v[{QR+4}:{QR+7}], v{vQoff}, s[{rQ}:{rQ+3}], s{sQrow} offen offset:16")
e(f"v_add_u32 v{vKo}, s{sHead}, v{vQoff}")
e(f"v_lshlrev_b32 v{vVo}, 4, v{vLane}")
e(f"v_add_u32 v{vVo}, s{sHead}, v{vVo}")
e(f"v_add_u32 v{vVa}, s{sT+6}, v{vT+8}")
e(f"v_cmp_eq_u32 vcc, 1, v{vOne}")
e(f"s_mov_b32 m0, s{sT+6}")
e(f"v_mov_b32 v{vM}, 0xff7fffff")
e(f"v_cndmask_b32 v{vVa}, v{vT+9}, v{vVa}, vcc")
for r in range(16): e(f"v_mov_b32 v{OB+r}, 0")
e(f"v_cmp_eq_u32 vcc, 0, v{vH}")
e(f"s_mov_b32 s{sStg}, 0")
e("s_waitcnt vmcnt(0)")
e(f"v_cndmask_b32 v{QR}, 0, v{QR}, vcc")
e(f"v_cndmask_b32 v{QR+1}, 0, v{QR+1}, vcc")
L("L_slow_loop")
for i in range(4):
    e(f"buffer_load_dwordx2 v[{KF[0]+2*i}:{KF[0]+2*i+1}], v{vKo}, s[{rK}:{rK+3}], s{sStg} offen offset:{8*i}")
e(f"buffer_load_dwordx4 v{vVo}, s[{rV}:{rV+3}], s{sStg} offen lds")
e(f"buffer_load_dwordx4 v{vVo}, s[{rV}:{rV+3}], s{sStg} offen offset:1024 lds")
e("s_waitcnt vmcnt(0)")
for s in vread(VF[0], 0, vVa): e(s)
q = qk(S, KF[0], QR)
e(q[0]); e(q[1])
e("s_nop 15")
e(f"v_max3_f32 v{vMn}, v{S}, v{S+1}, v{vM}")
for r in range(2, 16, 2):
    e(f"v_max3_f32 v{vMn}, v{S+r}, v{S+r+1}, v{vMn}")
e(f"v_mov_b32 v{vAl}, v{vMn}")
e("s_nop 1")
e(f"v_permlane32_swap_b32 v{vMn}, v{vAl}")
e("s_nop 1")
e(f"v_max_f32 v{vMn}, v{vMn}, v{vAl}")
e(f"v_sub_f32 v{vAl}, v{vM}, v{vMn}")
e(f"v_mul_f32 v{vAl}, s{sC}, v{vAl}")
e(f"v_exp_f32 v{vAl}, v{vAl}")
e(f"v_mov_b32 v{vM}, v{vMn}")
for r in range(16):
    e(f"v_sub_f32 v{S+r}, v{S+r}, v{vM}")
    e(f"v_mul_f32 v{S+r}, s{sC}, v{S+r}")
    e(f"v_exp_f32 v{S+r}, v{S+r}")
for r in range(16):
    e(f"v_mul_f32 v{OB+r}, v{vAl}, v{OB+r}")
e("s_waitcnt lgkmcnt(0)")
e("s_nop 1")
P = pv(OB, VF[0], S)
e(P[0]); e(P[1])
e("s_nop 15")
e(f"s_add_u32 s{sStg}, s{sStg}, 1792")
e(f"s_cmp_lt_u32 s{sStg}, {HEADB}")
e("s_cbranch_scc1 L_slow_loop")
e(f"v_mov_b32 v{vT}, v{OB+12}")
e(f"v_mov_b32 v{vT+1}, v{OB+12}")
e("s_nop 1")
e(f"v_permlane32_swap_b32 v{vT}, v{vT+1}")
e("s_nop 1")
e("s_branch L_fin")

out.append('.section .rodata,"a"')
out.append(".p2align 6")
out.append(f".amdhsa_kernel {NAME}_kernel")
out.append(f"  .amdhsa_next_free_vgpr {NVGPR}")
out.append("  .amdhsa_next_free_sgpr 102")
out.append(f"  .amdhsa_accum_offset {NVGPR}")
out.append("  .amdhsa_group_segment_fixed_size 0")
out.append("  .amdhsa_kernarg_size 48")
out.append("  .amdhsa_user_sgpr_count 2")
out.append("  .amdhsa_user_sgpr_kernarg_segment_ptr 1")
out.append("  .amdhsa_system_sgpr_workgroup_id_x 1")
out.append(".end_amdhsa_kernel")
open(sys.argv[1], "w").write("\n".join(out) + "\n")
```

```python
import sys
NAME = "standalone__fused_io_aware_attn__prompt"
HEADER = open("cdna_kernels/%s.s.ref" % NAME).read().split("; Override launch")[0]

CFG = dict(prio="ph", stamp=False)
for a in sys.argv[2:]:
    k, v = a.split("=")
    CFG[k] = {"True": True, "False": False, "None": None}.get(v, v)

BUFSZ = 3670016
HEADB = 114688
PIECE = 7168
SLOT = 4 * PIECE
NSLOT = 3
ONES = NSLOT * SLOT
XCH = ONES + 8192
LDS = XCH + 8 * 4096
CBITS = 0x3E8B9846
import struct, math
c = (28 ** -0.5) * math.log2(math.e)
CBITS = struct.unpack("<I", struct.pack("<f", c))[0]

SA = [2, 18]; SB = [34, 50]; OA = 66; OB = 82
QA = 98; QB = 106
KF = [114, 122]; VF = [130, 138]
vK = 146; vV = 147; vK0 = 148; vV0 = 149; vOne = 150; vIdx = 151; vDma = 152
vLane = 153; vH = 154; vQoff = 155; vX = 156; vOut = 157; vT = 158
NVGPR = 168
sQ = 4; sKp = 6; sVp = 8; sO = 10
rQ = 12; rD = 16; rO = 20; rK = 24; rV = 28
sW = 32; sHalf = 33; sHead = 34; sI = 35; sCur = 36; sNxt = 37; sNN = 38; sDmaL = 39; sStg = 40
sC = 42
sT = 44
sQrow = 52
sStamp = 56

out = []
def e(s): out.append("    " + s)
def L(s): out.append(s + ":")
def cm(s): out.append("    ; " + s)

def qk(S, Kf, Q):
    return [f"v_mfma_f32_32x32x16_bf16 v[{S}:{S+15}], v[{Kf}:{Kf+3}], v[{Q}:{Q+3}], 0",
            f"v_mfma_f32_32x32x16_bf16 v[{S}:{S+15}], v[{Kf+4}:{Kf+7}], v[{Q+4}:{Q+7}], v[{S}:{S+15}]"]
def pv(O, Vf, S):
    return [f"v_smfmac_f32_32x32x32_bf16 v[{O}:{O+15}], v[{Vf}:{Vf+3}], v[{S}:{S+7}], v{vIdx}",
            f"v_smfmac_f32_32x32x32_bf16 v[{O}:{O+15}], v[{Vf+4}:{Vf+7}], v[{S+8}:{S+15}], v{vIdx}"]
def ex(S): return [f"v_exp_f32 v{S+i}, v{S+i}" for i in range(16)]
def kread(dst, tile, addr=vK): return [f"ds_read_b64 v[{dst+2*i}:{dst+2*i+1}], v{addr} offset:{tile*1792+8*i}" for i in range(4)]
def vread(dst, tile, addr=vV):
    return [f"ds_read_b64_tr_b16 v[{dst+2*i}:{dst+2*i+1}], v{addr} offset:{tile*1792+(i>>1)*896+(i&1)*224}" for i in range(4)]
nstamp = [0]
def stamp():
    if CFG["stamp"]:
        k = nstamp[0]; nstamp[0] += 1
        e(f"s_memtime s[{sStamp+2*k}:{sStamp+2*k+1}]")

out.append(HEADER.rstrip())
out.append(f"; @launch grid=(256,1,1) block=(512,1,1) lds={LDS}")
out.append('.amdgcn_target "amdgcn-amd-amdhsa--gfx950"')
out.append(".text")
out.append(f".globl {NAME}_kernel")
out.append(".p2align 8")
out.append(f".type {NAME}_kernel,@function")
L(f"{NAME}_kernel")
stamp()
e("s_cmp_ge_u32 s2, 256")
e("s_cbranch_scc1 L_end")
e(f"s_load_dwordx8 s[4:11], s[0:1], 0")
if CFG["stamp"]:
    e(f"s_load_dwordx2 s[54:55], s[0:1], 32")
    e(f"s_memrealtime s[72:73]")
cm("wave id, lane decomposition")
e(f"v_lshrrev_b32 v1, 6, v0")
e(f"v_and_b32 v{vLane}, 63, v0")
e(f"v_readfirstlane_b32 s{sW}, v1")
e(f"v_lshrrev_b32 v{vH}, 5, v{vLane}")
e(f"v_and_b32 v{vT}, 31, v{vLane}")
cm("head = (b&7)*4 + ((b>>3)&3) ; qblk = b>>5")
e(f"s_and_b32 s{sT}, s2, 7")
e(f"s_lshl_b32 s{sT}, s{sT}, 2")
e(f"s_bfe_u32 s{sT+1}, s2, 0x20003")
e(f"s_add_u32 s{sHead}, s{sT}, s{sT+1}")
e(f"s_mul_i32 s{sHead}, s{sHead}, {HEADB}")
e(f"s_lshr_b32 s{sT}, s2, 5")
e(f"s_lshr_b32 s{sHalf}, s{sW}, 2")
e(f"s_and_b32 s{sT+1}, s{sW}, 3")
e(f"s_lshl_b32 s{sT}, s{sT}, 2")
e(f"s_add_u32 s{sT}, s{sT}, s{sT+1}")
e(f"s_lshl_b32 s{sT}, s{sT}, 1")
cm("tile A = 2*(qblk*4+g) + half ; tile B = the other one")
e(f"s_add_u32 s{sT+1}, s{sT}, s{sHalf}")
e(f"s_mul_i32 s{sT+1}, s{sT+1}, 1792")
e(f"s_add_u32 s{sT+1}, s{sT+1}, s{sHead}")
e(f"s_xor_b32 s{sT+2}, s{sHalf}, 1")
e(f"s_add_u32 s{sT+2}, s{sT}, s{sT+2}")
e(f"s_mul_i32 s{sT+2}, s{sT+2}, 1792")
e(f"s_add_u32 s{sQrow}, s{sT+2}, s{sHead}")
cm("vQoff = rho*56 + 24h")
e(f"v_mul_u32_u24 v{vQoff}, 56, v{vT}")
e(f"v_mul_u32_u24 v{vT+1}, 24, v{vH}")
e(f"v_add_u32 v{vQoff}, v{vQoff}, v{vT+1}")
cm("DMA lane offset: head + (p>>1)*57344 + (w&1)*3072 + lane*16 ; LDS piece offset p*7168 + (w&1)*3072")
e(f"s_mul_i32 s{sT+3}, s{sHalf}, 57344")
e(f"s_and_b32 s{sT+4}, s{sW}, 1")
e(f"s_mul_i32 s{sT+4}, s{sT+4}, 3072")
e(f"s_add_u32 s{sT+3}, s{sT+3}, s{sT+4}")
e(f"s_add_u32 s{sT+3}, s{sT+3}, s{sHead}")
e(f"v_lshlrev_b32 v{vX}, 4, v{vLane}")
e(f"v_add_u32 v{vDma}, s{sT+3}, v{vX}")
e(f"s_lshr_b32 s{sT+5}, s{sW}, 1")
e(f"s_mul_i32 s{sDmaL}, s{sT+5}, {PIECE}")
e(f"s_add_u32 s{sDmaL}, s{sDmaL}, s{sT+4}")
e(f"s_bitcmp1_b32 s{sW}, 1")
e(f"s_mov_b32 m0, s{sDmaL}")
e(f"s_waitcnt lgkmcnt(0)")
stamp()
e(f"s_cselect_b32 s{rD}, s{sVp}, s{sKp}")
e(f"s_cselect_b32 s{rD+1}, s{sVp+1}, s{sKp+1}")
e(f"s_mov_b32 s{rD+2}, {BUFSZ}")
e(f"s_mov_b32 s{rD+3}, 0x00020000")
e(f"s_mov_b32 s{rQ}, s{sQ}")
e(f"s_mov_b32 s{rQ+1}, s{sQ+1}")
e(f"s_mov_b32 s{rQ+2}, {BUFSZ}")
e(f"s_mov_b32 s{rQ+3}, 0x00020000")
e(f"buffer_load_dwordx4 v[{QA}:{QA+3}], v{vQoff}, s[{rQ}:{rQ+3}], s{sT+1} offen")
e(f"buffer_load_dwordx4 v[{QA+4}:{QA+7}], v{vQoff}, s[{rQ}:{rQ+3}], s{sT+1} offen offset:16")
for i in range(4):
    e(f"buffer_load_dwordx4 v{vDma}, s[{rD}:{rD+3}], 0 offen offset:{1024*i} lds")
e(f"s_add_u32 s{sT}, s{sDmaL}, {SLOT}")
e(f"s_mov_b32 m0, s{sT}")
e(f"s_mov_b32 s{sStg}, {PIECE}")
for i in range(4):
    e(f"buffer_load_dwordx4 v{vDma}, s[{rD}:{rD+3}], s{sStg} offen offset:{1024*i} lds")
cm("remaining setup in the shadow of the loads")
e(f"s_mov_b32 s{rO}, s{sO}")
e(f"s_mov_b32 s{rO+1}, s{sO+1}")
e(f"s_mov_b32 s{rO+2}, {BUFSZ}")
e(f"s_mov_b32 s{rO+3}, 0x00020000")
e(f"s_mov_b32 s{sC}, {hex(CBITS)}")
e(f"s_mov_b32 s{sC+1}, {hex(CBITS)}")
cm("ones region: 512 threads x 16 B")
e(f"v_mov_b32 v{vT+4}, 0x3f803f80")
e(f"v_mov_b32 v{vT+5}, 0x3f803f80")
e(f"v_mov_b32 v{vT+6}, 0x3f803f80")
e(f"v_mov_b32 v{vT+7}, 0x3f803f80")
e(f"v_lshlrev_b32 v{vT+1}, 4, v0")
e(f"v_add_u32 v{vT+1}, {ONES}, v{vT+1}")
e(f"ds_write_b128 v{vT+1}, v[{vT+4}:{vT+7}]")
cm("K read base")
e(f"s_mul_i32 s{sT}, s{sHalf}, {2*PIECE}")
e(f"v_add_u32 v{vK0}, s{sT}, v{vQoff}")
cm("V read base: half*14336 + 7168 + (8h+r)*56 + dchunk*8")
e(f"v_bfe_u32 v{vT+1}, v{vLane}, 2, 2")
e(f"v_lshl_add_u32 v{vT+1}, v{vH}, 3, v{vT+1}")
e(f"v_mul_u32_u24 v{vT+1}, 56, v{vT+1}")
e(f"v_and_b32 v{vT+2}, 1, v{vLane}")
e(f"v_lshlrev_b32 v{vT+2}, 2, v{vT+2}")
e(f"v_bfe_u32 v{vT+3}, v{vLane}, 4, 1")
e(f"v_lshl_add_u32 v{vT+2}, v{vT+3}, 1, v{vT+2}")
e(f"v_bfe_u32 v{vT+3}, v{vLane}, 1, 1")
e(f"v_add_u32 v{vT+2}, v{vT+2}, v{vT+3}")
e(f"v_lshl_add_u32 v{vT+1}, v{vT+2}, 3, v{vT+1}")
e(f"v_mov_b32 v{vT+8}, v{vT+1}")
e(f"s_add_u32 s{sT}, s{sT}, {PIECE}")
e(f"v_add_u32 v{vV0}, s{sT}, v{vT+1}")
e(f"v_cmp_ne_u32 vcc, 7, v{vT+2}")
e(f"v_mul_u32_u24 v{vT+3}, 64, v{vH}")
e(f"v_sub_u32 v{vT+3}, {ONES+224}, v{vT+3}")
e(f"v_mov_b32 v{vT+9}, v{vT+3}")
e(f"v_cndmask_b32 v{vV0}, v{vT+3}, v{vV0}, vcc")
e(f"v_cndmask_b32 v{vOne}, 0, 1, vcc")
e(f"v_mov_b32 v{vK}, v{vK0}")
e(f"v_mov_b32 v{vV}, v{vV0}")
e(f"v_mov_b32 v{vIdx}, 0xdddddddd")
cm("output lane offset: tile B rows + ql*56 + 32h")
e(f"v_lshl_add_u32 v{vOut}, v{vH}, 3, v{vQoff}")
e(f"v_add_u32 v{vOut}, s{sQrow}, v{vOut}")
for r in list(range(OA, OA+32)) + list(range(SB[1], SB[1]+16)) + list(range(VF[1], VF[1]+8)):
    e(f"v_mov_b32 v{r}, 0")
cm("exchange addresses: mine (write) in vX, partner (read) in vT+2")
e(f"s_lshl_b32 s{sT}, s{sW}, 12")
e(f"s_add_u32 s{sT}, s{sT}, {XCH}")
e(f"s_xor_b32 s{sT+1}, s{sW}, 4")
e(f"s_lshl_b32 s{sT+1}, s{sT+1}, 12")
e(f"s_add_u32 s{sT+6}, s{sT+1}, {XCH}")
e(f"v_add_u32 v1, s{sT+6}, v{vX}")
e(f"v_add_u32 v{vX}, s{sT}, v{vX}")
cm("per-lane scale for the duplicated dims (zero for h=1)")
e(f"v_cmp_eq_u32 vcc, 0, v{vH}")
e(f"v_mov_b32 v{vT+2}, s{sC}")
e(f"s_mov_b32 s{sI}, 0")
e(f"v_cndmask_b32 v{vT+2}, 0, v{vT+2}, vcc")
e(f"s_mov_b32 s{sCur}, 0")
e(f"v_mov_b32 v{vT+3}, v{vT+2}")
e(f"s_mov_b32 s{sNxt}, {SLOT}")
e(f"s_mov_b32 s{sNN}, {2*SLOT}")
e(f"s_waitcnt vmcnt(8)")
stamp()
cm("Q prep: bf16 -> f32, * scale*log2(e), -> bf16")
for i in range(8):
    t = vT + 4 + 2 * (i & 1)
    e(f"v_lshlrev_b32 v{t}, 16, v{QA+i}")
    e(f"v_and_b32 v{t+1}, 0xffff0000, v{QA+i}")
    if i < 2:
        e(f"v_pk_mul_f32 v[{t}:{t+1}], v[{t}:{t+1}], v[{vT+2}:{vT+3}]")
    else:
        e(f"v_pk_mul_f32 v[{t}:{t+1}], v[{t}:{t+1}], s[{sC}:{sC+1}]")
    e(f"v_cvt_pk_bf16_f32 v{QA+i}, v{t}, v{t+1}")
e(f"ds_write_b128 v{vX}, v[{QA}:{QA+3}]")
e(f"ds_write_b128 v{vX}, v[{QA+4}:{QA+7}] offset:1024")
e(f"s_waitcnt vmcnt(4) lgkmcnt(0)")
stamp()
e(f"s_barrier")
stamp()
for s in kread(KF[0], 0): e(s)
e(f"ds_read_b128 v[{QB}:{QB+3}], v1")
e(f"ds_read_b128 v[{QB+4}:{QB+7}], v1 offset:1024")
for s in kread(KF[1], 1): e(s)
for s in vread(VF[0], 0): e(s)
e(f"s_waitcnt lgkmcnt(10)")
q = qk(SA[0], KF[0], QA)
e(q[0]); e(q[1])
e(f"s_waitcnt lgkmcnt(8)")
q = qk(SB[0], KF[0], QB)
e(q[0]); e(q[1])
e("s_nop 7")
e("s_nop 1")
out.append(".p2align 6")
L("L_loop")
for t in range(4):
    p = t & 1
    for ph in (0, 1):
        if ph == 0:
            E = ex(SA[p]); P = pv(OB, VF[1-p], SB[1-p]); Q = qk(SA[1-p], KF[1-p], QA)
            rd = kread(KF[p], (t + 2) & 3)
        else:
            E = ex(SB[p]); P = pv(OA, VF[p], SA[p]); Q = qk(SB[1-p], KF[1-p], QB)
            rd = vread(VF[1-p], (t + 1) & 3)
        cm(f"tile {t} phase {'AB'[ph]}")
        if CFG["prio"] == "ph": e(f"s_setprio {1-ph}")
        if t == 2 and ph == 0:
            e("s_waitcnt vmcnt(0)")
            e("s_barrier")
            e(f"v_add_u32 v{vK}, s{sNxt}, v{vK0}")
            e(f"s_cmp_ge_u32 s{sI}, {int(CFG.get('iters',8))-2}")
            e("s_cbranch_scc1 L_nodma")
            e(f"s_add_u32 s{sT}, s{sDmaL}, s{sNN}")
            e(f"s_mov_b32 m0, s{sT}")
            e(f"s_add_u32 s{sStg}, s{sStg}, {PIECE}")
            if int(CFG.get('iters',8))>8:
                e(f"s_cmp_eq_u32 s{sStg}, {8*PIECE}")
                e(f"s_cselect_b32 s{sStg}, 0, s{sStg}")
            for i in range(4):
                e(f"buffer_load_dwordx4 v{vDma}, s[{rD}:{rD+3}], s{sStg} offen offset:{1024*i} lds")
            L("L_nodma")
        if t == 3 and ph == 1:
            e(f"v_mad_u32_u24 v{vV}, s{sNxt}, v{vOne}, v{vV0}")
        e("s_waitcnt lgkmcnt(4)")
        M = [P[0], Q[0], P[1], Q[1]]
        if ph == 1:
            pass
        for g4 in range(4):
            e(M[g4]); e(rd[g4])
            for s in E[4*g4:4*g4+4]: e(s)
cm("rotate slots")
e(f"s_mov_b32 s{sT}, s{sCur}")
e(f"s_mov_b32 s{sCur}, s{sNxt}")
e(f"s_mov_b32 s{sNxt}, s{sNN}")
e(f"s_mov_b32 s{sNN}, s{sT}")
e(f"s_add_u32 s{sI}, s{sI}, 1")
e(f"s_cmp_lt_u32 s{sI}, {int(CFG.get('iters',8))}")
e("s_cbranch_scc1 L_loop")
stamp()
cm("epilogue: last PV_B (tile 31, parity 1), exchange OA")
P = pv(OB, VF[1], SB[1])
e(P[0])
e("s_setprio 0")
e(P[1])
cm("OA's last SMFMAC was issued >= 12 instructions ago")
for i in range(4):
    e(f"ds_write_b128 v{vX}, v[{OA+4*i}:{OA+4*i+3}] offset:{1024*i}")
e("s_waitcnt lgkmcnt(0)")
e("s_barrier")
for i in range(4):
    e(f"ds_read_b128 v[{SA[0]+4*i}:{SA[0]+4*i+3}], v1 offset:{1024*i}")
e("s_nop 3")
for i in range(4):
    e(f"s_waitcnt lgkmcnt({3-i})")
    for j in range(2):
        r = 4*i + 2*j
        e(f"v_pk_add_f32 v[{OB+r}:{OB+r+1}], v[{OB+r}:{OB+r+1}], v[{SA[0]+r}:{SA[0]+r+1}]")
cm("row sum l -> all lanes")
e(f"v_mov_b32 v{vT}, v{OB+12}")
e(f"v_mov_b32 v{vT+1}, v{OB+12}")
cm("finite check: sum of all accumulators")
e(f"v_pk_add_f32 v[{vT+2}:{vT+3}], v[{OB}:{OB+1}], v[{OB+2}:{OB+3}]")
for r in range(4, 16, 2):
    e(f"v_pk_add_f32 v[{vT+2}:{vT+3}], v[{vT+2}:{vT+3}], v[{OB+r}:{OB+r+1}]")
    if r == 6: e(f"v_permlane32_swap_b32 v{vT}, v{vT+1}")
e(f"v_add_f32 v{vT+2}, v{vT+2}, v{vT+3}")
e(f"s_mov_b32 s{sT}, 0x30800000")
e(f"s_mov_b32 s{sT+1}, 0x6c800000")
e(f"v_cmp_nle_f32 vcc, s{sT}, v{vT+1}")
e(f"v_cmp_nge_f32 s[{sT+2}:{sT+3}], s{sT+1}, v{vT+1}")
e(f"s_mov_b32 s{sT+1}, 0x207")
e(f"v_cmp_class_f32 s[{sT+4}:{sT+5}], v{vT+2}, s{sT+1}")
e("s_nop 0")
e(f"s_or_b64 vcc, vcc, s[{sT+2}:{sT+3}]")
e(f"s_or_b64 vcc, vcc, s[{sT+4}:{sT+5}]")
e("s_cbranch_vccnz L_slow")
L("L_fin")
e(f"v_rcp_f32 v{vT+2}, v{vT+1}")
e("s_nop 0")
e(f"v_mov_b32 v{vT+3}, v{vT+2}")
for r in range(0, 16, 2):
    e(f"v_pk_mul_f32 v[{OB+r}:{OB+r+1}], v[{OB+r}:{OB+r+1}], v[{vT+2}:{vT+3}]")
for r in range(0, 16, 2):
    e(f"v_cvt_pk_bf16_f32 v{SA[1]+r//2}, v{OB+r}, v{OB+r+1}")
e(f"buffer_store_dwordx4 v[{SA[1]}:{SA[1]+3}], v{vOut}, s[{rO}:{rO+3}], 0 offen")
e(f"buffer_store_dwordx2 v[{SA[1]+4}:{SA[1]+5}], v{vOut}, s[{rO}:{rO+3}], 0 offen offset:16")
e("s_mov_b32 exec_hi, 0")
e(f"buffer_store_dwordx2 v[{SA[1]+6}:{SA[1]+7}], v{vOut}, s[{rO}:{rO+3}], 0 offen offset:24")
if CFG["stamp"]:
    stamp()
    e("s_memrealtime s[74:75]")
    e("s_waitcnt vmcnt(0)")
    stamp()
    e("s_waitcnt lgkmcnt(0)")
    wg = int(CFG.get("swg", 0)); wv = int(CFG.get("swave", 0))
    e(f"s_cmp_eq_u32 s2, {wg}")
    e("s_cbranch_scc0 L_end")
    e(f"s_cmp_eq_u32 s{sW}, {wv}")
    e("s_cbranch_scc0 L_end")
    e("s_mov_b32 s76, s54")
    e("s_mov_b32 s77, s55")
    e("s_mov_b32 s78, 256")
    e("s_mov_b32 s79, 0x00020000")
    e("s_mov_b64 exec, 1")
    n = nstamp[0]
    for k in range(1, n):
        e(f"s_sub_u32 s{sT}, s{sStamp+2*k}, s{sStamp}")
        e(f"v_mov_b32 v2, s{sT}")
        e(f"v_mov_b32 v3, {4*(k-1)}")
        e("buffer_store_dword v2, v3, s[76:79], 0 offen")
        e("s_nop 1")
    e(f"s_sub_u32 s{sT}, s74, s72")
    e(f"v_mov_b32 v2, s{sT}")
    e(f"v_mov_b32 v3, {4*(n-1)}")
    e("buffer_store_dword v2, v3, s[76:79], 0 offen")
L("L_end")
e("s_endpgm")

cm("fallback: exact online-max softmax for this wave's 32 queries (tile B), all 2048 keys")
L("L_slow")
QR = QA; S = SA[0]; vM = vT; vMn = vT + 1; vAl = vT + 2; vKo = vT + 4; vVo = vT + 5; vVa = vT + 6
e(f"s_mov_b32 s{rK}, s{sKp}")
e(f"s_mov_b32 s{rK+1}, s{sKp+1}")
e(f"s_mov_b32 s{rK+2}, {BUFSZ}")
e(f"s_mov_b32 s{rK+3}, 0x00020000")
e(f"s_mov_b32 s{rV}, s{sVp}")
e(f"s_mov_b32 s{rV+1}, s{sVp+1}")
e(f"s_mov_b32 s{rV+2}, {BUFSZ}")
e(f"s_mov_b32 s{rV+3}, 0x00020000")
e(f"buffer_load_dwordx4 v[{QR}:{QR+3}], v{vQoff}, s[{rQ}:{rQ+3}], s{sQrow} offen")
e(f"buffer_load_dwordx4 v[{QR+4}:{QR+7}], v{vQoff}, s[{rQ}:{rQ+3}], s{sQrow} offen offset:16")
e(f"v_add_u32 v{vKo}, s{sHead}, v{vQoff}")
e(f"v_lshlrev_b32 v{vVo}, 4, v{vLane}")
e(f"v_add_u32 v{vVo}, s{sHead}, v{vVo}")
e(f"v_add_u32 v{vVa}, s{sT+6}, v{vT+8}")
e(f"v_cmp_eq_u32 vcc, 1, v{vOne}")
e(f"s_mov_b32 m0, s{sT+6}")
e(f"v_mov_b32 v{vM}, 0xff7fffff")
e(f"v_cndmask_b32 v{vVa}, v{vT+9}, v{vVa}, vcc")
for r in range(16): e(f"v_mov_b32 v{OB+r}, 0")
e(f"v_cmp_eq_u32 vcc, 0, v{vH}")
e(f"s_mov_b32 s{sStg}, 0")
e("s_waitcnt vmcnt(0)")
e(f"v_cndmask_b32 v{QR}, 0, v{QR}, vcc")
e(f"v_cndmask_b32 v{QR+1}, 0, v{QR+1}, vcc")
L("L_slow_loop")
for i in range(4):
    e(f"buffer_load_dwordx2 v[{KF[0]+2*i}:{KF[0]+2*i+1}], v{vKo}, s[{rK}:{rK+3}], s{sStg} offen offset:{8*i}")
e(f"buffer_load_dwordx4 v{vVo}, s[{rV}:{rV+3}], s{sStg} offen lds")
e(f"buffer_load_dwordx4 v{vVo}, s[{rV}:{rV+3}], s{sStg} offen offset:1024 lds")
e("s_waitcnt vmcnt(0)")
for s in vread(VF[0], 0, vVa): e(s)
q = qk(S, KF[0], QR)
e(q[0]); e(q[1])
e("s_nop 15")
e(f"v_max3_f32 v{vMn}, v{S}, v{S+1}, v{vM}")
for r in range(2, 16, 2):
    e(f"v_max3_f32 v{vMn}, v{S+r}, v{S+r+1}, v{vMn}")
e(f"v_mov_b32 v{vAl}, v{vMn}")
e("s_nop 1")
e(f"v_permlane32_swap_b32 v{vMn}, v{vAl}")
e("s_nop 1")
e(f"v_max_f32 v{vMn}, v{vMn}, v{vAl}")
e(f"v_sub_f32 v{vAl}, v{vM}, v{vMn}")
e(f"v_mul_f32 v{vAl}, s{sC}, v{vAl}")
e(f"v_exp_f32 v{vAl}, v{vAl}")
e(f"v_mov_b32 v{vM}, v{vMn}")
for r in range(16):
    e(f"v_sub_f32 v{S+r}, v{S+r}, v{vM}")
    e(f"v_mul_f32 v{S+r}, s{sC}, v{S+r}")
    e(f"v_exp_f32 v{S+r}, v{S+r}")
for r in range(16):
    e(f"v_mul_f32 v{OB+r}, v{vAl}, v{OB+r}")
e("s_waitcnt lgkmcnt(0)")
e("s_nop 1")
P = pv(OB, VF[0], S)
e(P[0]); e(P[1])
e("s_nop 15")
e(f"s_add_u32 s{sStg}, s{sStg}, 1792")
e(f"s_cmp_lt_u32 s{sStg}, {HEADB}")
e("s_cbranch_scc1 L_slow_loop")
e(f"v_mov_b32 v{vT}, v{OB+12}")
e(f"v_mov_b32 v{vT+1}, v{OB+12}")
e("s_nop 1")
e(f"v_permlane32_swap_b32 v{vT}, v{vT+1}")
e("s_nop 1")
e("s_branch L_fin")

out.append('.section .rodata,"a"')
out.append(".p2align 6")
out.append(f".amdhsa_kernel {NAME}_kernel")
out.append(f"  .amdhsa_next_free_vgpr {NVGPR}")
out.append("  .amdhsa_next_free_sgpr 102")
out.append(f"  .amdhsa_accum_offset {NVGPR}")
out.append("  .amdhsa_group_segment_fixed_size 0")
out.append("  .amdhsa_kernarg_size 48")
out.append("  .amdhsa_user_sgpr_count 2")
out.append("  .amdhsa_user_sgpr_kernarg_segment_ptr 1")
out.append("  .amdhsa_system_sgpr_workgroup_id_x 1")
out.append(".end_amdhsa_kernel")
open(sys.argv[1], "w").write("\n".join(out) + "\n")
```

```python
import sys
NAME = "standalone__fused_io_aware_attn__prompt"
HEADER = open("cdna_kernels/%s.s.ref" % NAME).read().split("; Override launch")[0]

CFG = dict(prio="ph", stamp=False)
for a in sys.argv[2:]:
    k, v = a.split("=")
    CFG[k] = {"True": True, "False": False, "None": None}.get(v, v)

BUFSZ = 3670016
HEADB = 114688
PIECE = 7168
SLOT = 4 * PIECE
NSLOT = 3
ONES = NSLOT * SLOT
XCH = ONES + 8192
LDS = XCH + 8 * 4096
CBITS = 0x3E8B9846
import struct, math
c = (28 ** -0.5) * math.log2(math.e)
CBITS = struct.unpack("<I", struct.pack("<f", c))[0]

SA = [2, 18]; SB = [34, 50]; OA = 66; OB = 82
QA = 98; QB = 106
KF = [114, 122]; VF = [130, 138]
vK = 146; vV = 147; vK0 = 148; vV0 = 149; vOne = 150; vIdx = 151; vDma = 152
vLane = 153; vH = 154; vQoff = 155; vX = 156; vOut = 157; vT = 158
NVGPR = 172 if CFG.get('itst') else 168
sQ = 4; sKp = 6; sVp = 8; sO = 10
rQ = 12; rD = 16; rO = 20; rK = 24; rV = 28
sW = 32; sHalf = 33; sHead = 34; sI = 35; sCur = 36; sNxt = 37; sNN = 38; sDmaL = 39; sStg = 40
sC = 42
sT = 44
sQrow = 52
sStamp = 56

out = []
def e(s): out.append("    " + s)
def L(s): out.append(s + ":")
def cm(s): out.append("    ; " + s)

def qk(S, Kf, Q):
    return [f"v_mfma_f32_32x32x16_bf16 v[{S}:{S+15}], v[{Kf}:{Kf+3}], v[{Q}:{Q+3}], 0",
            f"v_mfma_f32_32x32x16_bf16 v[{S}:{S+15}], v[{Kf+4}:{Kf+7}], v[{Q+4}:{Q+7}], v[{S}:{S+15}]"]
def pv(O, Vf, S):
    return [f"v_smfmac_f32_32x32x32_bf16 v[{O}:{O+15}], v[{Vf}:{Vf+3}], v[{S}:{S+7}], v{vIdx}",
            f"v_smfmac_f32_32x32x32_bf16 v[{O}:{O+15}], v[{Vf+4}:{Vf+7}], v[{S+8}:{S+15}], v{vIdx}"]
def ex(S): return [f"v_exp_f32 v{S+i}, v{S+i}" for i in range(16)]
def kread(dst, tile, addr=vK): return [f"ds_read_b64 v[{dst+2*i}:{dst+2*i+1}], v{addr} offset:{tile*1792+8*i}" for i in range(4)]
def vread(dst, tile, addr=vV):
    return [f"ds_read_b64_tr_b16 v[{dst+2*i}:{dst+2*i+1}], v{addr} offset:{tile*1792+(i>>1)*896+(i&1)*224}" for i in range(4)]
nstamp = [0]
def stamp():
    if CFG["stamp"]:
        k = nstamp[0]; nstamp[0] += 1
        e(f"s_memtime s[{sStamp+2*k}:{sStamp+2*k+1}]")

out.append(HEADER.rstrip())
out.append(f"; @launch grid=(256,1,1) block=(512,1,1) lds={LDS}")
out.append('.amdgcn_target "amdgcn-amd-amdhsa--gfx950"')
out.append(".text")
out.append(f".globl {NAME}_kernel")
out.append(".p2align 8")
out.append(f".type {NAME}_kernel,@function")
L(f"{NAME}_kernel")
stamp()
e("s_cmp_ge_u32 s2, 256")
e("s_cbranch_scc1 L_end")
e(f"s_load_dwordx8 s[4:11], s[0:1], 0")
if CFG["stamp"]:
    e(f"s_load_dwordx2 s[54:55], s[0:1], 32")
    e(f"s_memrealtime s[72:73]")
cm("wave id, lane decomposition")
e(f"v_lshrrev_b32 v1, 6, v0")
e(f"v_and_b32 v{vLane}, 63, v0")
e(f"v_readfirstlane_b32 s{sW}, v1")
e(f"v_lshrrev_b32 v{vH}, 5, v{vLane}")
e(f"v_and_b32 v{vT}, 31, v{vLane}")
cm("head = (b&7)*4 + ((b>>3)&3) ; qblk = b>>5")
e(f"s_and_b32 s{sT}, s2, 7")
e(f"s_lshl_b32 s{sT}, s{sT}, 2")
e(f"s_bfe_u32 s{sT+1}, s2, 0x20003")
e(f"s_add_u32 s{sHead}, s{sT}, s{sT+1}")
e(f"s_mul_i32 s{sHead}, s{sHead}, {HEADB}")
e(f"s_lshr_b32 s{sT}, s2, 5")
e(f"s_lshr_b32 s{sHalf}, s{sW}, 2")
e(f"s_and_b32 s{sT+1}, s{sW}, 3")
e(f"s_lshl_b32 s{sT}, s{sT}, 2")
e(f"s_add_u32 s{sT}, s{sT}, s{sT+1}")
e(f"s_lshl_b32 s{sT}, s{sT}, 1")
cm("tile A = 2*(qblk*4+g) + half ; tile B = the other one")
e(f"s_add_u32 s{sT+1}, s{sT}, s{sHalf}")
e(f"s_mul_i32 s{sT+1}, s{sT+1}, 1792")
e(f"s_add_u32 s{sT+1}, s{sT+1}, s{sHead}")
e(f"s_xor_b32 s{sT+2}, s{sHalf}, 1")
e(f"s_add_u32 s{sT+2}, s{sT}, s{sT+2}")
e(f"s_mul_i32 s{sT+2}, s{sT+2}, 1792")
e(f"s_add_u32 s{sQrow}, s{sT+2}, s{sHead}")
cm("vQoff = rho*56 + 24h")
e(f"v_mul_u32_u24 v{vQoff}, 56, v{vT}")
e(f"v_mul_u32_u24 v{vT+1}, 24, v{vH}")
e(f"v_add_u32 v{vQoff}, v{vQoff}, v{vT+1}")
cm("DMA lane offset: head + (p>>1)*57344 + (w&1)*3072 + lane*16 ; LDS piece offset p*7168 + (w&1)*3072")
e(f"s_mul_i32 s{sT+3}, s{sHalf}, 57344")
e(f"s_and_b32 s{sT+4}, s{sW}, 1")
e(f"s_mul_i32 s{sT+4}, s{sT+4}, 3072")
e(f"s_add_u32 s{sT+3}, s{sT+3}, s{sT+4}")
e(f"s_add_u32 s{sT+3}, s{sT+3}, s{sHead}")
e(f"v_lshlrev_b32 v{vX}, 4, v{vLane}")
e(f"v_add_u32 v{vDma}, s{sT+3}, v{vX}")
e(f"s_lshr_b32 s{sT+5}, s{sW}, 1")
e(f"s_mul_i32 s{sDmaL}, s{sT+5}, {PIECE}")
e(f"s_add_u32 s{sDmaL}, s{sDmaL}, s{sT+4}")
e(f"s_bitcmp1_b32 s{sW}, 1")
e(f"s_mov_b32 m0, s{sDmaL}")
e(f"s_waitcnt lgkmcnt(0)")
stamp()
e(f"s_cselect_b32 s{rD}, s{sVp}, s{sKp}")
e(f"s_cselect_b32 s{rD+1}, s{sVp+1}, s{sKp+1}")
e(f"s_mov_b32 s{rD+2}, {BUFSZ}")
e(f"s_mov_b32 s{rD+3}, 0x00020000")
e(f"s_mov_b32 s{rQ}, s{sQ}")
e(f"s_mov_b32 s{rQ+1}, s{sQ+1}")
e(f"s_mov_b32 s{rQ+2}, {BUFSZ}")
e(f"s_mov_b32 s{rQ+3}, 0x00020000")
e(f"buffer_load_dwordx4 v[{QA}:{QA+3}], v{vQoff}, s[{rQ}:{rQ+3}], s{sT+1} offen")
e(f"buffer_load_dwordx4 v[{QA+4}:{QA+7}], v{vQoff}, s[{rQ}:{rQ+3}], s{sT+1} offen offset:16")
for i in range(4):
    e(f"buffer_load_dwordx4 v{vDma}, s[{rD}:{rD+3}], 0 offen offset:{1024*i} lds")
e(f"s_add_u32 s{sT}, s{sDmaL}, {SLOT}")
e(f"s_mov_b32 m0, s{sT}")
e(f"s_mov_b32 s{sStg}, {PIECE}")
for i in range(4):
    e(f"buffer_load_dwordx4 v{vDma}, s[{rD}:{rD+3}], s{sStg} offen offset:{1024*i} lds")
cm("remaining setup in the shadow of the loads")
e(f"s_mov_b32 s{rO}, s{sO}")
e(f"s_mov_b32 s{rO+1}, s{sO+1}")
e(f"s_mov_b32 s{rO+2}, {BUFSZ}")
e(f"s_mov_b32 s{rO+3}, 0x00020000")
e(f"s_mov_b32 s{sC}, {hex(CBITS)}")
e(f"s_mov_b32 s{sC+1}, {hex(CBITS)}")
cm("ones region: 512 threads x 16 B")
e(f"v_mov_b32 v{vT+4}, 0x3f803f80")
e(f"v_mov_b32 v{vT+5}, 0x3f803f80")
e(f"v_mov_b32 v{vT+6}, 0x3f803f80")
e(f"v_mov_b32 v{vT+7}, 0x3f803f80")
e(f"v_lshlrev_b32 v{vT+1}, 4, v0")
e(f"v_add_u32 v{vT+1}, {ONES}, v{vT+1}")
e(f"ds_write_b128 v{vT+1}, v[{vT+4}:{vT+7}]")
cm("K read base")
e(f"s_mul_i32 s{sT}, s{sHalf}, {2*PIECE}")
e(f"v_add_u32 v{vK0}, s{sT}, v{vQoff}")
cm("V read base: half*14336 + 7168 + (8h+r)*56 + dchunk*8")
e(f"v_bfe_u32 v{vT+1}, v{vLane}, 2, 2")
e(f"v_lshl_add_u32 v{vT+1}, v{vH}, 3, v{vT+1}")
e(f"v_mul_u32_u24 v{vT+1}, 56, v{vT+1}")
e(f"v_and_b32 v{vT+2}, 1, v{vLane}")
e(f"v_lshlrev_b32 v{vT+2}, 2, v{vT+2}")
e(f"v_bfe_u32 v{vT+3}, v{vLane}, 4, 1")
e(f"v_lshl_add_u32 v{vT+2}, v{vT+3}, 1, v{vT+2}")
e(f"v_bfe_u32 v{vT+3}, v{vLane}, 1, 1")
e(f"v_add_u32 v{vT+2}, v{vT+2}, v{vT+3}")
e(f"v_lshl_add_u32 v{vT+1}, v{vT+2}, 3, v{vT+1}")
e(f"v_mov_b32 v{vT+8}, v{vT+1}")
e(f"s_add_u32 s{sT}, s{sT}, {PIECE}")
e(f"v_add_u32 v{vV0}, s{sT}, v{vT+1}")
e(f"v_cmp_ne_u32 vcc, 7, v{vT+2}")
e(f"v_mul_u32_u24 v{vT+3}, 64, v{vH}")
e(f"v_sub_u32 v{vT+3}, {ONES+224}, v{vT+3}")
e(f"v_mov_b32 v{vT+9}, v{vT+3}")
e(f"v_cndmask_b32 v{vV0}, v{vT+3}, v{vV0}, vcc")
e(f"v_cndmask_b32 v{vOne}, 0, 1, vcc")
if CFG.get("link"): e(f"v_lshlrev_b32 v{vK0}, 3, v{vLane}")
if CFG.get("linv"): e(f"v_lshlrev_b32 v{vV0}, 3, v{vLane}")
e(f"v_mov_b32 v{vK}, v{vK0}")
e(f"v_mov_b32 v{vV}, v{vV0}")
e(f"v_mov_b32 v{vIdx}, 0xdddddddd")
cm("output lane offset: tile B rows + ql*56 + 32h")
e(f"v_lshl_add_u32 v{vOut}, v{vH}, 3, v{vQoff}")
e(f"v_add_u32 v{vOut}, s{sQrow}, v{vOut}")
for r in list(range(OA, OA+32)) + list(range(SB[1], SB[1]+16)) + list(range(VF[1], VF[1]+8)):
    e(f"v_mov_b32 v{r}, 0")
cm("exchange addresses: mine (write) in vX, partner (read) in vT+2")
e(f"s_lshl_b32 s{sT}, s{sW}, 12")
e(f"s_add_u32 s{sT}, s{sT}, {XCH}")
e(f"s_xor_b32 s{sT+1}, s{sW}, 4")
e(f"s_lshl_b32 s{sT+1}, s{sT+1}, 12")
e(f"s_add_u32 s{sT+6}, s{sT+1}, {XCH}")
e(f"v_add_u32 v1, s{sT+6}, v{vX}")
e(f"v_add_u32 v{vX}, s{sT}, v{vX}")
cm("per-lane scale for the duplicated dims (zero for h=1)")
e(f"v_cmp_eq_u32 vcc, 0, v{vH}")
e(f"v_mov_b32 v{vT+2}, s{sC}")
e(f"s_mov_b32 s{sI}, 0")
e(f"v_cndmask_b32 v{vT+2}, 0, v{vT+2}, vcc")
e(f"s_mov_b32 s{sCur}, 0")
e(f"v_mov_b32 v{vT+3}, v{vT+2}")
e(f"s_mov_b32 s{sNxt}, {SLOT}")
e(f"s_mov_b32 s{sNN}, {2*SLOT}")
e(f"s_waitcnt vmcnt(8)")
stamp()
cm("Q prep: bf16 -> f32, * scale*log2(e), -> bf16")
for i in range(8):
    t = vT + 4 + 2 * (i & 1)
    e(f"v_lshlrev_b32 v{t}, 16, v{QA+i}")
    e(f"v_and_b32 v{t+1}, 0xffff0000, v{QA+i}")
    if i < 2:
        e(f"v_pk_mul_f32 v[{t}:{t+1}], v[{t}:{t+1}], v[{vT+2}:{vT+3}]")
    else:
        e(f"v_pk_mul_f32 v[{t}:{t+1}], v[{t}:{t+1}], s[{sC}:{sC+1}]")
    e(f"v_cvt_pk_bf16_f32 v{QA+i}, v{t}, v{t+1}")
e(f"ds_write_b128 v{vX}, v[{QA}:{QA+3}]")
e(f"ds_write_b128 v{vX}, v[{QA+4}:{QA+7}] offset:1024")
e(f"s_waitcnt vmcnt(4) lgkmcnt(0)")
stamp()
e(f"s_barrier")
stamp()
for s in kread(KF[0], 0): e(s)
e(f"ds_read_b128 v[{QB}:{QB+3}], v1")
e(f"ds_read_b128 v[{QB+4}:{QB+7}], v1 offset:1024")
for s in kread(KF[1], 1): e(s)
for s in vread(VF[0], 0): e(s)
e(f"s_waitcnt lgkmcnt(10)")
q = qk(SA[0], KF[0], QA)
e(q[0]); e(q[1])
e(f"s_waitcnt lgkmcnt(8)")
q = qk(SB[0], KF[0], QB)
e(q[0]); e(q[1])
e("s_nop 7")
e("s_nop 1")
out.append(".p2align 6")
L("L_loop")
for t in range(4):
    p = t & 1
    for ph in (0, 1):
        if ph == 0:
            E = ex(SA[p]); P = pv(OB, VF[1-p], SB[1-p]); Q = qk(SA[1-p], KF[1-p], QA)
            rd = kread(KF[p], (t + 2) & 3)
        else:
            E = ex(SB[p]); P = pv(OA, VF[p], SA[p]); Q = qk(SB[1-p], KF[1-p], QB)
            rd = vread(VF[1-p], (t + 1) & 3)
        cm(f"tile {t} phase {'AB'[ph]}")
        if CFG["prio"] == "ph": e(f"s_setprio {1-ph}")
        if t == 2 and ph == 0:
            if CFG.get("itst"):
                e("s_memtime s[80:81]")
                e("s_memrealtime s[82:83]")
                e("s_waitcnt lgkmcnt(0)")
                e(f"s_sub_u32 s80, s80, s{sStamp}")
                e(f"s_sub_u32 s82, s82, s72")
                e(f"s_lshl_b32 s84, s{sI}, 1")
                e(f"s_add_u32 s85, s84, 1")
                e(f"s_mov_b32 s86, m0")
                e(f"s_mov_b32 m0, s84")
                e(f"v_writelane_b32 v168, s80, m0")
                e(f"s_mov_b32 m0, s85")
                e(f"v_writelane_b32 v168, s82, m0")
                e(f"s_mov_b32 m0, s86")
            if not CFG.get("novm"): e("s_waitcnt vmcnt(0)")
            if not CFG.get("nobar"): e("s_barrier")
            e(f"v_add_u32 v{vK}, s{sNxt}, v{vK0}")
            e(f"s_cmp_ge_u32 s{sI}, {int(CFG.get('iters',8))-2}")
            e("s_cbranch_scc1 L_nodma" if not CFG.get("nodma") else "s_branch L_nodma")
            e(f"s_add_u32 s{sT}, s{sDmaL}, s{sNN}")
            e(f"s_mov_b32 m0, s{sT}")
            e(f"s_add_u32 s{sStg}, s{sStg}, {PIECE}")
            if int(CFG.get('iters',8))>8:
                e(f"s_cmp_eq_u32 s{sStg}, {8*PIECE}")
                e(f"s_cselect_b32 s{sStg}, 0, s{sStg}")
            for i in range(4):
                e(f"buffer_load_dwordx4 v{vDma}, s[{rD}:{rD+3}], s{sStg} offen offset:{1024*i} lds")
            if CFG.get("al"):
                out.append(".p2align 3"); e("s_nop 0")
            L("L_nodma")
        if t == 3 and ph == 1:
            e(f"v_mad_u32_u24 v{vV}, s{sNxt}, v{vOne}, v{vV0}")
        e("s_waitcnt lgkmcnt(4)")
        M = [P[0], Q[0], P[1], Q[1]]
        if ph == 1:
            pass
        for g4 in range(4):
            e(M[g4]); e(rd[g4])
            for s in E[4*g4:4*g4+4]: e(s)
cm("rotate slots")
e(f"s_mov_b32 s{sT}, s{sCur}")
e(f"s_mov_b32 s{sCur}, s{sNxt}")
e(f"s_mov_b32 s{sNxt}, s{sNN}")
e(f"s_mov_b32 s{sNN}, s{sT}")
e(f"s_add_u32 s{sI}, s{sI}, 1")
e(f"s_cmp_lt_u32 s{sI}, {int(CFG.get('iters',8))}")
e("s_cbranch_scc1 L_loop")
stamp()
cm("epilogue: last PV_B (tile 31, parity 1), exchange OA")
P = pv(OB, VF[1], SB[1])
e(P[0])
e("s_setprio 0")
e(P[1])
cm("OA's last SMFMAC was issued >= 12 instructions ago")
for i in range(4):
    e(f"ds_write_b128 v{vX}, v[{OA+4*i}:{OA+4*i+3}] offset:{1024*i}")
e("s_waitcnt lgkmcnt(0)")
e("s_barrier")
for i in range(4):
    e(f"ds_read_b128 v[{SA[0]+4*i}:{SA[0]+4*i+3}], v1 offset:{1024*i}")
e("s_nop 3")
for i in range(4):
    e(f"s_waitcnt lgkmcnt({3-i})")
    for j in range(2):
        r = 4*i + 2*j
        e(f"v_pk_add_f32 v[{OB+r}:{OB+r+1}], v[{OB+r}:{OB+r+1}], v[{SA[0]+r}:{SA[0]+r+1}]")
cm("row sum l -> all lanes")
e(f"v_mov_b32 v{vT}, v{OB+12}")
e(f"v_mov_b32 v{vT+1}, v{OB+12}")
cm("finite check: sum of all accumulators")
e(f"v_pk_add_f32 v[{vT+2}:{vT+3}], v[{OB}:{OB+1}], v[{OB+2}:{OB+3}]")
for r in range(4, 16, 2):
    e(f"v_pk_add_f32 v[{vT+2}:{vT+3}], v[{vT+2}:{vT+3}], v[{OB+r}:{OB+r+1}]")
    if r == 6: e(f"v_permlane32_swap_b32 v{vT}, v{vT+1}")
e(f"v_add_f32 v{vT+2}, v{vT+2}, v{vT+3}")
e(f"s_mov_b32 s{sT}, 0x30800000")
e(f"s_mov_b32 s{sT+1}, 0x6c800000")
e(f"v_cmp_nle_f32 vcc, s{sT}, v{vT+1}")
e(f"v_cmp_nge_f32 s[{sT+2}:{sT+3}], s{sT+1}, v{vT+1}")
e(f"s_mov_b32 s{sT+1}, 0x207")
e(f"v_cmp_class_f32 s[{sT+4}:{sT+5}], v{vT+2}, s{sT+1}")
e("s_nop 0")
e(f"s_or_b64 vcc, vcc, s[{sT+2}:{sT+3}]")
e(f"s_or_b64 vcc, vcc, s[{sT+4}:{sT+5}]")
e("s_cbranch_vccnz L_slow")
L("L_fin")
e(f"v_rcp_f32 v{vT+2}, v{vT+1}")
e("s_nop 0")
e(f"v_mov_b32 v{vT+3}, v{vT+2}")
for r in range(0, 16, 2):
    e(f"v_pk_mul_f32 v[{OB+r}:{OB+r+1}], v[{OB+r}:{OB+r+1}], v[{vT+2}:{vT+3}]")
for r in range(0, 16, 2):
    e(f"v_cvt_pk_bf16_f32 v{SA[1]+r//2}, v{OB+r}, v{OB+r+1}")
e(f"buffer_store_dwordx4 v[{SA[1]}:{SA[1]+3}], v{vOut}, s[{rO}:{rO+3}], 0 offen")
e(f"buffer_store_dwordx2 v[{SA[1]+4}:{SA[1]+5}], v{vOut}, s[{rO}:{rO+3}], 0 offen offset:16")
e("s_mov_b32 exec_hi, 0")
e(f"buffer_store_dwordx2 v[{SA[1]+6}:{SA[1]+7}], v{vOut}, s[{rO}:{rO+3}], 0 offen offset:24")
if CFG["stamp"]:
    stamp()
    e("s_memrealtime s[74:75]")
    e("s_waitcnt vmcnt(0)")
    stamp()
    e("s_waitcnt lgkmcnt(0)")
    if CFG.get("glob"):
        e("s_memrealtime s[74:75]")
        e("s_waitcnt lgkmcnt(0)")
        e("s_mov_b32 s76, s54")
        e("s_mov_b32 s77, s55")
        e("s_mov_b32 s78, 256")
        e("s_mov_b32 s79, 0x00020000")
        e("s_mov_b64 exec, 1")
        e("s_not_b32 s80, s72")
        e("s_not_b32 s81, s74")
        e("v_mov_b32 v3, 0")
        e("v_mov_b32 v4, s72")
        e("v_mov_b32 v5, s80")
        e("v_mov_b32 v6, s74")
        e("v_mov_b32 v7, s81")
        e("buffer_atomic_umax v4, v3, s[76:79], 0 offen")
        e("buffer_atomic_umax v5, v3, s[76:79], 0 offen offset:4")
        e("buffer_atomic_umax v6, v3, s[76:79], 0 offen offset:8")
        e("buffer_atomic_umax v7, v3, s[76:79], 0 offen offset:12")
        e("s_branch L_end")
    wg = int(CFG.get("swg", 0)); wv = int(CFG.get("swave", 0))
    e(f"s_cmp_eq_u32 s2, {wg}")
    e("s_cbranch_scc0 L_end")
    e("s_mov_b32 s76, s54")
    e("s_mov_b32 s77, s55")
    e("s_mov_b32 s78, 256")
    e("s_mov_b32 s79, 0x00020000")
    e("s_mov_b64 exec, 1")
    if CFG.get("raw"):
        e(f"s_lshl_b32 s{sT+2}, s{sW}, 5")
        e(f"v_mov_b32 v3, s{sT+2}")
        for k in range(8):
            e(f"v_mov_b32 v2, s{sStamp+2*k}")
            e(f"buffer_store_dword v2, v3, s[76:79], 0 offen offset:{4*k}")
            e("s_nop 1")
        e("s_branch L_end")
    if CFG.get("allw"):
        e(f"s_sub_u32 s{sT}, s{sStamp+10}, s{sStamp+8}")
        e(f"s_getreg_b32 s{sT+1}, hwreg(HW_REG_HW_ID)")
        e(f"s_lshl_b32 s{sT+2}, s{sW}, 2")
        e(f"v_mov_b32 v2, s{sT}")
        e(f"v_mov_b32 v4, s{sT+1}")
        e(f"v_mov_b32 v3, s{sT+2}")
        e("buffer_store_dword v2, v3, s[76:79], 0 offen offset:192")
        e("buffer_store_dword v4, v3, s[76:79], 0 offen offset:224")
        e("s_nop 1")
    e(f"s_cmp_eq_u32 s{sW}, {wv}")
    e("s_cbranch_scc0 L_end")
    n = nstamp[0]
    for k in range(1, n):
        e(f"s_sub_u32 s{sT}, s{sStamp+2*k}, s{sStamp}")
        e(f"v_mov_b32 v2, s{sT}")
        e(f"v_mov_b32 v3, {4*(k-1)}")
        e("buffer_store_dword v2, v3, s[76:79], 0 offen")
        e("s_nop 1")
    e(f"s_sub_u32 s{sT}, s74, s72")
    e(f"v_mov_b32 v2, s{sT}")
    e(f"v_mov_b32 v3, {4*(n-1)}")
    e("buffer_store_dword v2, v3, s[76:79], 0 offen")
    if CFG.get("itst"):
        e("s_mov_b32 exec_lo, -1")
        e(f"v_lshlrev_b32 v3, 2, v{vLane}")
        e("v_add_u32 v3, 64, v3")
        e("buffer_store_dword v168, v3, s[76:79], 0 offen")
L("L_end")
e("s_endpgm")

cm("fallback: exact online-max softmax for this wave's 32 queries (tile B), all 2048 keys")
L("L_slow")
QR = QA; S = SA[0]; vM = vT; vMn = vT + 1; vAl = vT + 2; vKo = vT + 4; vVo = vT + 5; vVa = vT + 6
e(f"s_mov_b32 s{rK}, s{sKp}")
e(f"s_mov_b32 s{rK+1}, s{sKp+1}")
e(f"s_mov_b32 s{rK+2}, {BUFSZ}")
e(f"s_mov_b32 s{rK+3}, 0x00020000")
e(f"s_mov_b32 s{rV}, s{sVp}")
e(f"s_mov_b32 s{rV+1}, s{sVp+1}")
e(f"s_mov_b32 s{rV+2}, {BUFSZ}")
e(f"s_mov_b32 s{rV+3}, 0x00020000")
e(f"buffer_load_dwordx4 v[{QR}:{QR+3}], v{vQoff}, s[{rQ}:{rQ+3}], s{sQrow} offen")
e(f"buffer_load_dwordx4 v[{QR+4}:{QR+7}], v{vQoff}, s[{rQ}:{rQ+3}], s{sQrow} offen offset:16")
e(f"v_add_u32 v{vKo}, s{sHead}, v{vQoff}")
e(f"v_lshlrev_b32 v{vVo}, 4, v{vLane}")
e(f"v_add_u32 v{vVo}, s{sHead}, v{vVo}")
e(f"v_add_u32 v{vVa}, s{sT+6}, v{vT+8}")
e(f"v_cmp_eq_u32 vcc, 1, v{vOne}")
e(f"s_mov_b32 m0, s{sT+6}")
e(f"v_mov_b32 v{vM}, 0xff7fffff")
e(f"v_cndmask_b32 v{vVa}, v{vT+9}, v{vVa}, vcc")
for r in range(16): e(f"v_mov_b32 v{OB+r}, 0")
e(f"v_cmp_eq_u32 vcc, 0, v{vH}")
e(f"s_mov_b32 s{sStg}, 0")
e("s_waitcnt vmcnt(0)")
e(f"v_cndmask_b32 v{QR}, 0, v{QR}, vcc")
e(f"v_cndmask_b32 v{QR+1}, 0, v{QR+1}, vcc")
L("L_slow_loop")
for i in range(4):
    e(f"buffer_load_dwordx2 v[{KF[0]+2*i}:{KF[0]+2*i+1}], v{vKo}, s[{rK}:{rK+3}], s{sStg} offen offset:{8*i}")
e(f"buffer_load_dwordx4 v{vVo}, s[{rV}:{rV+3}], s{sStg} offen lds")
e(f"buffer_load_dwordx4 v{vVo}, s[{rV}:{rV+3}], s{sStg} offen offset:1024 lds")
e("s_waitcnt vmcnt(0)")
for s in vread(VF[0], 0, vVa): e(s)
q = qk(S, KF[0], QR)
e(q[0]); e(q[1])
e("s_nop 15")
e(f"v_max3_f32 v{vMn}, v{S}, v{S+1}, v{vM}")
for r in range(2, 16, 2):
    e(f"v_max3_f32 v{vMn}, v{S+r}, v{S+r+1}, v{vMn}")
e(f"v_mov_b32 v{vAl}, v{vMn}")
e("s_nop 1")
e(f"v_permlane32_swap_b32 v{vMn}, v{vAl}")
e("s_nop 1")
e(f"v_max_f32 v{vMn}, v{vMn}, v{vAl}")
e(f"v_sub_f32 v{vAl}, v{vM}, v{vMn}")
e(f"v_mul_f32 v{vAl}, s{sC}, v{vAl}")
e(f"v_exp_f32 v{vAl}, v{vAl}")
e(f"v_mov_b32 v{vM}, v{vMn}")
for r in range(16):
    e(f"v_sub_f32 v{S+r}, v{S+r}, v{vM}")
    e(f"v_mul_f32 v{S+r}, s{sC}, v{S+r}")
    e(f"v_exp_f32 v{S+r}, v{S+r}")
for r in range(16):
    e(f"v_mul_f32 v{OB+r}, v{vAl}, v{OB+r}")
e("s_waitcnt lgkmcnt(0)")
e("s_nop 1")
P = pv(OB, VF[0], S)
e(P[0]); e(P[1])
e("s_nop 15")
e(f"s_add_u32 s{sStg}, s{sStg}, 1792")
e(f"s_cmp_lt_u32 s{sStg}, {HEADB}")
e("s_cbranch_scc1 L_slow_loop")
e(f"v_mov_b32 v{vT}, v{OB+12}")
e(f"v_mov_b32 v{vT+1}, v{OB+12}")
e("s_nop 1")
e(f"v_permlane32_swap_b32 v{vT}, v{vT+1}")
e("s_nop 1")
e("s_branch L_fin")

out.append('.section .rodata,"a"')
out.append(".p2align 6")
out.append(f".amdhsa_kernel {NAME}_kernel")
out.append(f"  .amdhsa_next_free_vgpr {NVGPR}")
out.append("  .amdhsa_next_free_sgpr 102")
out.append(f"  .amdhsa_accum_offset {NVGPR}")
out.append("  .amdhsa_group_segment_fixed_size 0")
out.append("  .amdhsa_kernarg_size 48")
out.append("  .amdhsa_user_sgpr_count 2")
out.append("  .amdhsa_user_sgpr_kernarg_segment_ptr 1")
out.append("  .amdhsa_system_sgpr_workgroup_id_x 1")
out.append(".end_amdhsa_kernel")
open(sys.argv[1], "w").write("\n".join(out) + "\n")
```

```python
import sys, struct, math
NAME = "standalone__fused_io_aware_attn__prompt"
HEADER = open("cdna_kernels/%s.s.ref" % NAME).read().split("; Override launch")[0]

CFG = dict(stamp=False, e1=16, pa1=17, pa2=21, st="")
for a in sys.argv[2:]:
    k, v = a.split("=")
    CFG[k] = {"True": True, "False": False, "None": None}.get(v, v)
ITERS = int(CFG.get("iters", 8))
E1 = int(CFG["e1"])

BUFSZ = 3670016
HEADB = 114688
PIECE = 7168
SLOT = 4 * PIECE
NSLOT = 4
ONES = NSLOT * SLOT
XCH = ONES + 8192
FLAG = XCH + 8 * 4096
LDS = FLAG + 2048
c = (28 ** -0.5) * math.log2(math.e)
CBITS = struct.unpack("<I", struct.pack("<f", c))[0]

SA = [4, 20]; SB = [36, 52]; OA = 68; OB = 84
QA = 100; QB = 108
KF = [116, 124]; VF = [132, 140]
vK = 148; vV = 149; vK0 = 150; vV0 = 151; vOne = 152; vIdx = 153; vDma = 154
vLane = 155; vH = 156; vQoff = 157; vX = 158; vOut = 159; vXr = 160; vFw = 161; vFr = 162; vProg = 163; vFl = 164
vSl0 = 165; vSl1 = 166
vT = 168
NVGPR = 176
sQ = 4; sKp = 6; sVp = 8; sO = 10
rQ = 12; rD = 16; rO = 20; rK = 24; rV = 28
sW = 32; sHalf = 33; sHead = 34; sI = 35; sCur = 36; sNxt = 37; sDm = 38; sDmaL = 39; sStg = 40; sOff3 = 41
sC = 42
sT = 44
sXr = 50; sSo = 51; sQrow = 52; sQA = 53
sStamp = 56

out = []
def e(s): out.append("    " + s)
def L(s): out.append(s + ":")
def cm(s): out.append("    ; " + s)

def qk(S, Kf, Q):
    return [f"v_mfma_f32_32x32x16_bf16 v[{S}:{S+15}], v[{Kf}:{Kf+3}], v[{Q}:{Q+3}], 0",
            f"v_mfma_f32_32x32x16_bf16 v[{S}:{S+15}], v[{Kf+4}:{Kf+7}], v[{Q+4}:{Q+7}], v[{S}:{S+15}]"]
def pv(O, Vf, S):
    return [f"v_smfmac_f32_32x32x32_bf16 v[{O}:{O+15}], v[{Vf}:{Vf+3}], v[{S}:{S+7}], v{vIdx}",
            f"v_smfmac_f32_32x32x32_bf16 v[{O}:{O+15}], v[{Vf+4}:{Vf+7}], v[{S+8}:{S+15}], v{vIdx}"]
def ex(S): return [f"v_exp_f32 v{S+i}, v{S+i}" for i in range(16)]
def kread(dst, tile, addr=vK): return [f"ds_read_b64 v[{dst+2*i}:{dst+2*i+1}], v{addr} offset:{tile*1792+8*i}" for i in range(4)]
def vread(dst, tile, addr=vV):
    return [f"ds_read_b64_tr_b16 v[{dst+2*i}:{dst+2*i+1}], v{addr} offset:{tile*1792+(i>>1)*896+(i&1)*224}" for i in range(4)]
def dma(t):
    off = [None, "2048", "4096", f"s{sOff3}"][t]
    if off is None:
        return [f"s_mov_b32 m0, s{sDm}", f"s_mov_b32 s{sSo}, s{sStg}",
                f"buffer_load_dwordx4 v{vDma}, s[{rD}:{rD+3}], s{sSo} offen lds"]
    return [f"s_add_u32 m0, s{sDm}, {off}", f"s_add_u32 s{sSo}, s{sStg}, {off}",
            f"buffer_load_dwordx4 v{vDma}, s[{rD}:{rD+3}], s{sSo} offen lds"]
nstamp = [0]
def stamp():
    if CFG["stamp"]:
        k = nstamp[0]; nstamp[0] += 1
        e(f"s_memtime s[{sStamp+2*k}:{sStamp+2*k+1}]")

out.append(HEADER.rstrip())
out.append(f"; @launch grid=(256,1,1) block=(512,1,1) lds={LDS}")
out.append('.amdgcn_target "amdgcn-amd-amdhsa--gfx950"')
out.append(".text")
out.append(f".globl {NAME}_kernel")
out.append(".p2align 8")
out.append(f".type {NAME}_kernel,@function")
L(f"{NAME}_kernel")
stamp()
e(f"s_load_dwordx8 s[4:11], s[0:1], 0")
e("s_cmp_ge_u32 s2, 256")
e("s_cbranch_scc1 L_end")
if CFG["stamp"]:
    e(f"s_load_dwordx2 s[54:55], s[0:1], 32")
    e(f"s_memrealtime s[72:73]")
cm("wave id, lane decomposition")
e(f"v_lshrrev_b32 v1, 6, v0")
e(f"v_and_b32 v{vLane}, 63, v0")
e(f"v_readfirstlane_b32 s{sW}, v1")
e(f"v_lshrrev_b32 v{vH}, 5, v{vLane}")
e(f"v_and_b32 v{vT}, 31, v{vLane}")
cm("head = (b&7)*4 + ((b>>3)&3) ; qblk = b>>5")
e(f"s_and_b32 s{sT}, s2, 7")
e(f"s_lshl_b32 s{sT}, s{sT}, 2")
e(f"s_bfe_u32 s{sT+1}, s2, 0x20003")
e(f"s_add_u32 s{sHead}, s{sT}, s{sT+1}")
e(f"s_mul_i32 s{sHead}, s{sHead}, {HEADB}")
e(f"s_lshr_b32 s{sT}, s2, 5")
e(f"s_lshr_b32 s{sHalf}, s{sW}, 2")
e(f"s_and_b32 s{sT+1}, s{sW}, 3")
e(f"s_lshl_b32 s{sT}, s{sT}, 2")
e(f"s_add_u32 s{sT}, s{sT}, s{sT+1}")
e(f"s_lshl_b32 s{sT}, s{sT}, 1")
cm("tile A = 2*(qblk*4+g) + half ; tile B = the other one")
e(f"s_add_u32 s{sT+1}, s{sT}, s{sHalf}")
e(f"s_mul_i32 s{sT+1}, s{sT+1}, 1792")
e(f"s_add_u32 s{sQA}, s{sT+1}, s{sHead}")
e(f"s_xor_b32 s{sT+2}, s{sHalf}, 1")
e(f"s_add_u32 s{sT+2}, s{sT}, s{sT+2}")
e(f"s_mul_i32 s{sT+2}, s{sT+2}, 1792")
e(f"s_add_u32 s{sQrow}, s{sT+2}, s{sHead}")
cm("vQoff = rho*56 + 24h")
e(f"v_mul_u32_u24 v{vQoff}, 56, v{vT}")
e(f"v_mul_u32_u24 v{vT+1}, 24, v{vH}")
e(f"v_add_u32 v{vQoff}, v{vQoff}, v{vT+1}")
cm("DMA lane offset: head + half*57344 + (w&1)*1024 + lane*16 ; LDS piece offset (w>>1)*7168 + (w&1)*1024")
e(f"s_mul_i32 s{sT+3}, s{sHalf}, 57344")
e(f"s_and_b32 s{sT+4}, s{sW}, 1")
e(f"s_lshl_b32 s{sT+4}, s{sT+4}, 10")
e(f"s_add_u32 s{sT+3}, s{sT+3}, s{sT+4}")
e(f"s_add_u32 s{sT+3}, s{sT+3}, s{sHead}")
e(f"v_lshlrev_b32 v{vX}, 4, v{vLane}")
e(f"v_add_u32 v{vDma}, s{sT+3}, v{vX}")
e(f"s_lshr_b32 s{sT+5}, s{sW}, 1")
e(f"s_mul_i32 s{sDmaL}, s{sT+5}, {PIECE}")
e(f"s_add_u32 s{sDmaL}, s{sDmaL}, s{sT+4}")
e(f"s_sub_u32 s{sOff3}, 6144, s{sT+4}")
e(f"s_mov_b32 s{rD+2}, {BUFSZ}")
e(f"s_mov_b32 s{rD+3}, 0x00020000")
e(f"s_mov_b32 s{rQ+2}, {BUFSZ}")
e(f"s_mov_b32 s{rQ+3}, 0x00020000")
e(f"s_mov_b32 m0, s{sDmaL}")
e(f"s_bitcmp1_b32 s{sW}, 1")
e(f"s_waitcnt lgkmcnt(0)")
stamp()
e(f"s_mov_b32 s{rQ}, s{sQ}")
e(f"s_mov_b32 s{rQ+1}, s{sQ+1}")
e(f"s_cselect_b32 s{rD}, s{sVp}, s{sKp}")
e(f"s_cselect_b32 s{rD+1}, s{sVp+1}, s{sKp+1}")
e(f"buffer_load_dwordx4 v[{QA}:{QA+3}], v{vQoff}, s[{rQ}:{rQ+3}], s{sQA} offen")
e(f"buffer_load_dwordx4 v[{QA+4}:{QA+7}], v{vQoff}, s[{rQ}:{rQ+3}], s{sQA} offen offset:16")
e(f"buffer_load_dwordx4 v{vDma}, s[{rD}:{rD+3}], 0 offen lds")
e(f"buffer_load_dwordx4 v{vDma}, s[{rD}:{rD+3}], 0 offen offset:2048 lds")
cm("remaining setup in the shadow of the loads")
e(f"s_mov_b32 s{rO}, s{sO}")
e(f"s_mov_b32 s{rO+1}, s{sO+1}")
e(f"s_mov_b32 s{rO+2}, {BUFSZ}")
e(f"s_mov_b32 s{rO+3}, 0x00020000")
e(f"s_mov_b32 s{sC}, {hex(CBITS)}")
e(f"s_mov_b32 s{sC+1}, {hex(CBITS)}")
cm("ones region: 512 threads x 16 B of (1,0,0,0) ; progress flags = 0")
e(f"v_mov_b32 v{vT+4}, 0x3f80")
e(f"v_mov_b32 v{vT+5}, 0")
e(f"v_mov_b32 v{vT+6}, 0x3f80")
e(f"v_mov_b32 v{vT+7}, 0")
e(f"v_lshlrev_b32 v{vT+1}, 4, v0")
e(f"v_add_u32 v{vT+1}, {ONES}, v{vT+1}")
e(f"ds_write_b128 v{vT+1}, v[{vT+4}:{vT+7}]")
e(f"v_lshlrev_b32 v{vFw}, 2, v0")
e(f"v_add_u32 v{vFw}, {FLAG}, v{vFw}")
e(f"ds_write_b32 v{vFw}, v{vT+5}")
e(f"v_and_b32 v{vT+2}, 3, v{vLane}")
e(f"v_lshlrev_b32 v{vT+2}, 8, v{vT+2}")
e(f"v_lshl_add_u32 v{vT+2}, v{vLane}, 2, v{vT+2}")
e(f"s_lshl_b32 s{sT}, s{sHalf}, 10")
e(f"s_add_u32 s{sT}, s{sT}, {FLAG}")
e(f"v_add_u32 v{vFr}, s{sT}, v{vT+2}")
e(f"v_mov_b32 v{vProg}, 1")
cm("K read base")
e(f"s_mul_i32 s{sT}, s{sHalf}, {2*PIECE}")
e(f"v_add_u32 v{vK0}, s{sT}, v{vQoff}")
cm("V read base: half*14336 + 7168 + (8h+r)*56 + dchunk*8")
e(f"v_bfe_u32 v{vT+1}, v{vLane}, 2, 2")
e(f"v_lshl_add_u32 v{vT+1}, v{vH}, 3, v{vT+1}")
e(f"v_mul_u32_u24 v{vT+1}, 56, v{vT+1}")
e(f"v_and_b32 v{vT+2}, 1, v{vLane}")
e(f"v_lshlrev_b32 v{vT+2}, 2, v{vT+2}")
e(f"v_bfe_u32 v{vT+3}, v{vLane}, 4, 1")
e(f"v_lshl_add_u32 v{vT+2}, v{vT+3}, 1, v{vT+2}")
e(f"v_bfe_u32 v{vT+3}, v{vLane}, 1, 1")
e(f"v_add_u32 v{vT+2}, v{vT+2}, v{vT+3}")
e(f"v_lshl_add_u32 v{vSl0}, v{vT+2}, 3, v{vT+1}")
e(f"s_add_u32 s{sT}, s{sT}, {PIECE}")
e(f"v_add_u32 v{vV0}, s{sT}, v{vSl0}")
e(f"v_cmp_ne_u32 vcc, 7, v{vT+2}")
e(f"v_mul_u32_u24 v{vSl1}, 64, v{vH}")
e(f"v_sub_u32 v{vSl1}, {ONES+224}, v{vSl1}")
e(f"v_mov_b32 v{vK}, v{vK0}")
e(f"v_cndmask_b32 v{vV0}, v{vSl1}, v{vV0}, vcc")
e(f"v_cndmask_b32 v{vOne}, 0, 1, vcc")
e(f"v_mov_b32 v{vV}, v{vV0}")
e(f"v_mov_b32 v{vIdx}, 0xdddddddd")
cm("second half of stage 0")
e(f"s_mov_b32 s{sDm}, s{sDmaL}")
e(f"s_mov_b32 s{sStg}, 0")
for s in dma(2) + dma(3): e(s)
cm("output lane offset: tile B rows + ql*56 + 32h")
e(f"v_lshl_add_u32 v{vOut}, v{vH}, 3, v{vQoff}")
e(f"v_add_u32 v{vOut}, s{sQrow}, v{vOut}")
for r in range(OA, OA+32):
    e(f"v_mov_b32 v{r}, 0")
cm("exchange addresses: mine (write) in vX, partner (read) in vXr")
e(f"s_lshl_b32 s{sT}, s{sW}, 12")
e(f"s_add_u32 s{sT}, s{sT}, {XCH}")
e(f"s_xor_b32 s{sT+1}, s{sW}, 4")
e(f"s_lshl_b32 s{sT+1}, s{sT+1}, 12")
e(f"s_add_u32 s{sXr}, s{sT+1}, {XCH}")
e(f"v_add_u32 v{vXr}, s{sXr}, v{vX}")
e(f"v_add_u32 v{vX}, s{sT}, v{vX}")
cm("per-lane scale for the duplicated dims (zero for h=1)")
e(f"v_cmp_eq_u32 vcc, 0, v{vH}")
e(f"v_mov_b32 v{vT+2}, s{sC}")
e(f"s_mov_b32 s{sI}, 0")
e(f"v_cndmask_b32 v{vT+2}, 0, v{vT+2}, vcc")
e(f"s_add_u32 s{sDm}, s{sDmaL}, {SLOT}")
e(f"v_mov_b32 v{vT+3}, v{vT+2}")
e(f"s_mov_b32 s{sStg}, {PIECE}")
e(f"s_waitcnt vmcnt(4)")
stamp()
cm("stage 1")
for t in range(4):
    for s in dma(t): e(s)
cm("Q prep: bf16 -> f32, * scale*log2(e), -> bf16")
for i in range(8):
    t = vT + 4 + 2 * (i & 1)
    e(f"v_lshlrev_b32 v{t}, 16, v{QA+i}")
    e(f"v_and_b32 v{t+1}, 0xffff0000, v{QA+i}")
    if i < 2:
        e(f"v_pk_mul_f32 v[{t}:{t+1}], v[{t}:{t+1}], v[{vT+2}:{vT+3}]")
    else:
        e(f"v_pk_mul_f32 v[{t}:{t+1}], v[{t}:{t+1}], s[{sC}:{sC+1}]")
    e(f"v_cvt_pk_bf16_f32 v{QA+i}, v{t}, v{t+1}")
    if i == 3: e(f"ds_write_b128 v{vX}, v[{QA}:{QA+3}]")
e(f"ds_write_b128 v{vX}, v[{QA+4}:{QA+7}] offset:1024")
e(f"s_add_u32 s{sDm}, s{sDmaL}, {2*SLOT}")
e(f"s_mov_b32 s{sStg}, {2*PIECE}")
e(f"s_mov_b32 s{sCur}, 0")
e(f"s_mov_b32 s{sNxt}, {SLOT}")
e(f"s_waitcnt vmcnt(6) lgkmcnt(0)")
stamp()
e(f"s_barrier")
stamp()
cm("peeled M(0): QK only")
e("s_setprio 3")
for s in kread(KF[0], 0): e(s)
e(f"ds_read_b128 v[{QB}:{QB+3}], v{vXr}")
e(f"ds_read_b128 v[{QB+4}:{QB+7}], v{vXr} offset:1024")
for s in vread(VF[0], 0): e(s)
for s in kread(KF[1], 1): e(s)
e(f"s_waitcnt lgkmcnt(10)")
q = qk(SA[0], KF[0], QA)
e(q[0]); e(q[1])
e(f"s_waitcnt lgkmcnt(8)")
q = qk(SB[0], KF[0], QB)
e(q[0])
e("s_waitcnt vmcnt(4)")
e(f"ds_write_b32 v{vFw}, v{vProg}")
e(q[1])
for s in dma(0): e(s)
e("s_nop 3")
e("s_branch L_E0")

def mseg(t):
    p = t & 1
    QAm = qk(SA[p], KF[p], QA); QBm = qk(SB[p], KF[p], QB)
    PA = pv(OA, VF[1-p], SA[1-p]); PB = pv(OB, VF[1-p], SB[1-p])
    M = QAm + PA + QBm + PB
    kr = kread(KF[1-p], (t + 1) & 3); vr = vread(VF[p], t)
    fill = [[] for _ in range(8)]
    cm(f"M({t})")
    e("s_setprio 3")
    if t == 0:
        e(f"v_mad_u32_u24 v{vV}, s{sCur}, v{vOne}, v{vV0}")
    e("s_waitcnt lgkmcnt(0)")
    if p == 0:
        fill[0] += [f"v_add_u32 v{vProg}, 1, v{vProg}", "s_waitcnt vmcnt(4)", f"ds_write_b32 v{vFw}, v{vProg}"]
        for i in range(4): fill[i] += [vr[i]]
        for i in range(4): fill[4+i] += [kr[i]]
        fill[5] += dma(t)
    else:
        fill[0] += [f"ds_read_b32 v{vFl}, v{vFr}"]
        for i in range(4): fill[i] += [vr[i]]
        if t == 3: fill[2] += [f"v_add_u32 v{vK}, s{sNxt}, v{vK0}"]
        fill[3] += ["s_waitcnt lgkmcnt(4)", f"v_cmp_gt_u32 vcc, v{vProg}, v{vFl}", f"s_cbranch_vccnz L_poll{t}", f"L_pollok{t}:"]
        for i in range(4): fill[4+i] += [kr[i]]
        fill[5] += dma(t)
        if t == 3:
            fill[6] += [f"s_mov_b32 s{sCur}, s{sNxt}",
                        f"s_add_u32 s{sI}, s{sI}, 1",
                        f"s_add_u32 s{sT}, s{sI}, 1", f"s_and_b32 s{sT}, s{sT}, 3", f"s_mul_i32 s{sNxt}, s{sT}, {SLOT}"]
            fill[7] += [f"s_add_u32 s{sT}, s{sI}, 2", f"s_and_b32 s{sT}, s{sT}, 3", f"s_mul_i32 s{sT}, s{sT}, {SLOT}",
                        f"s_add_u32 s{sDm}, s{sT}, s{sDmaL}",
                        f"s_add_u32 s{sStg}, s{sStg}, {PIECE}"]
            if ITERS > 8:
                fill[7] += [f"s_cmp_eq_u32 s{sStg}, {8*PIECE}", f"s_cselect_b32 s{sStg}, 0, s{sStg}"]
            fill[7] += [f"s_cmp_ge_u32 s{sI}, {ITERS-2}", f"s_cselect_b32 s{sStg}, 0x40000000, s{sStg}",
                        f"s_cmp_eq_u32 s{sI}, {ITERS}", "s_cbranch_scc1 L_tail"]
    for g in range(8):
        e(M[g])
        for s in fill[g]:
            if s.endswith(":"): out.append(s)
            else: e(s)
def eseg(t):
    p = t & 1
    E = ex(SA[p]) + ex(SB[p])
    cm(f"E({t})")
    e("s_setprio 0")
    for s in E[:E1]: e(s)
    e("s_setprio 1")
    for s in E[E1:]: e(s)

out.append(".p2align 6")
L("L_loop")
mseg(0)
L("L_E0")
eseg(0)
for t in (1, 2):
    mseg(t); eseg(t)
mseg(3); eseg(3)
e("s_branch L_loop")
for t in (1, 3):
    L(f"L_poll{t}")
    e(f"ds_read_b32 v{vFl}, v{vFr}")
    e("s_waitcnt lgkmcnt(0)")
    e(f"v_cmp_gt_u32 vcc, v{vProg}, v{vFl}")
    e(f"s_cbranch_vccnz L_poll{t}")
    e(f"s_branch L_pollok{t}")

L("L_tail")
cm("E(31) with the last PV and the exchange of OA folded in")
E = ex(SA[1]) + ex(SB[1])
PA = pv(OA, VF[1], SA[1]); PB = pv(OB, VF[1], SB[1])
pa1 = int(CFG["pa1"]); pa2 = int(CFG["pa2"])
e("s_setprio 0")
for i, s in enumerate(E):
    if i == E1: e("s_setprio 1")
    if i == pa1:
        e("s_waitcnt lgkmcnt(0)")
        e(PA[0])
    if i == pa2: e(PA[1])
    if i == 27: e(PB[0])
    e(s)
stamp()
nafter = (32 - pa2) + 1 + (1 if CFG["stamp"] else 0)
if nafter < 12: e(f"s_nop {11 - nafter}")
e(f"ds_write_b128 v{vX}, v[{OA}:{OA+3}]")
e(f"ds_write_b128 v{vX}, v[{OA+4}:{OA+7}] offset:1024")
e(PB[1])
e(f"ds_write_b128 v{vX}, v[{OA+8}:{OA+11}] offset:2048")
e(f"ds_write_b128 v{vX}, v[{OA+12}:{OA+15}] offset:3072")
e(f"s_mov_b32 s{sT}, 0x30800000")
e(f"s_mov_b32 s{sT+1}, 0x6c800000")
e(f"s_mov_b32 s{sSo}, 0x207")
e("s_waitcnt lgkmcnt(0)")
e("s_barrier")
for i in (3, 0, 1, 2):
    e(f"ds_read_b128 v[{SA[0]+4*i}:{SA[0]+4*i+3}], v{vXr} offset:{1024*i}")
e("s_nop 1")
e(f"s_waitcnt lgkmcnt(3)")
e(f"v_pk_add_f32 v[{OB+12}:{OB+13}], v[{OB+12}:{OB+13}], v[{SA[0]+12}:{SA[0]+13}]")
e(f"v_pk_add_f32 v[{OB+14}:{OB+15}], v[{OB+14}:{OB+15}], v[{SA[0]+14}:{SA[0]+15}]")
cm("row sum l -> all lanes")
e(f"v_mov_b32 v{vT}, v{OB+12}")
e(f"v_mov_b32 v{vT+1}, v{OB+12}")
e(f"s_waitcnt lgkmcnt(2)")
e(f"v_pk_add_f32 v[{OB}:{OB+1}], v[{OB}:{OB+1}], v[{SA[0]}:{SA[0]+1}]")
e(f"v_permlane32_swap_b32 v{vT}, v{vT+1}")
e(f"v_pk_add_f32 v[{OB+2}:{OB+3}], v[{OB+2}:{OB+3}], v[{SA[0]+2}:{SA[0]+3}]")
e(f"s_waitcnt lgkmcnt(1)")
e(f"v_pk_add_f32 v[{OB+4}:{OB+5}], v[{OB+4}:{OB+5}], v[{SA[0]+4}:{SA[0]+5}]")
e(f"v_rcp_f32 v{vT+4}, v{vT+1}")
e(f"v_pk_add_f32 v[{OB+6}:{OB+7}], v[{OB+6}:{OB+7}], v[{SA[0]+6}:{SA[0]+7}]")
e(f"s_waitcnt lgkmcnt(0)")
e(f"v_pk_add_f32 v[{OB+8}:{OB+9}], v[{OB+8}:{OB+9}], v[{SA[0]+8}:{SA[0]+9}]")
e(f"v_pk_add_f32 v[{OB+10}:{OB+11}], v[{OB+10}:{OB+11}], v[{SA[0]+10}:{SA[0]+11}]")
cm("safety check of the unshifted exponentials: l in [2^-30, 2^90] and all accumulators finite")
e(f"v_cmp_nle_f32 vcc, s{sT}, v{vT+1}")
e(f"v_cmp_nge_f32 s[{sT+2}:{sT+3}], s{sT+1}, v{vT+1}")
e(f"v_pk_add_f32 v[{vT+2}:{vT+3}], v[{OB}:{OB+1}], v[{OB+2}:{OB+3}]")
e(f"v_pk_add_f32 v[{vT+6}:{vT+7}], v[{OB+4}:{OB+5}], v[{OB+6}:{OB+7}]")
e(f"v_pk_add_f32 v[{SA[0]}:{SA[0]+1}], v[{OB+8}:{OB+9}], v[{OB+10}:{OB+11}]")
e(f"v_pk_add_f32 v[{SA[0]+2}:{SA[0]+3}], v[{OB+12}:{OB+13}], v[{OB+14}:{OB+15}]")
e(f"v_pk_add_f32 v[{vT+2}:{vT+3}], v[{vT+2}:{vT+3}], v[{vT+6}:{vT+7}]")
e(f"v_pk_add_f32 v[{SA[0]}:{SA[0]+1}], v[{SA[0]}:{SA[0]+1}], v[{SA[0]+2}:{SA[0]+3}]")
e(f"v_mov_b32 v{vT+5}, v{vT+4}")
e(f"v_pk_add_f32 v[{vT+2}:{vT+3}], v[{vT+2}:{vT+3}], v[{SA[0]}:{SA[0]+1}]")
e(f"s_or_b64 vcc, vcc, s[{sT+2}:{sT+3}]")
e(f"v_add_f32 v{vT+2}, v{vT+2}, v{vT+3}")
e(f"v_cmp_class_f32 s[{sT+4}:{sT+5}], v{vT+2}, s{sSo}")
e("s_nop 0")
e(f"s_or_b64 vcc, vcc, s[{sT+4}:{sT+5}]")
e("s_cbranch_vccnz L_slow")
L("L_fin")
ST = CFG["st"].replace("+", " ")
for r in range(0, 8, 2):
    e(f"v_pk_mul_f32 v[{OB+r}:{OB+r+1}], v[{OB+r}:{OB+r+1}], v[{vT+4}:{vT+5}]")
for r in range(0, 8, 2):
    e(f"v_cvt_pk_bf16_f32 v{SA[1]+r//2}, v{OB+r}, v{OB+r+1}")
e(f"buffer_store_dwordx4 v[{SA[1]}:{SA[1]+3}], v{vOut}, s[{rO}:{rO+3}], 0 offen {ST}")
for r in range(8, 16, 2):
    e(f"v_pk_mul_f32 v[{OB+r}:{OB+r+1}], v[{OB+r}:{OB+r+1}], v[{vT+4}:{vT+5}]")
for r in range(8, 16, 2):
    e(f"v_cvt_pk_bf16_f32 v{SA[1]+r//2}, v{OB+r}, v{OB+r+1}")
e(f"buffer_store_dwordx2 v[{SA[1]+4}:{SA[1]+5}], v{vOut}, s[{rO}:{rO+3}], 0 offen offset:16 {ST}")
e("s_mov_b32 exec_hi, 0")
e(f"buffer_store_dwordx2 v[{SA[1]+6}:{SA[1]+7}], v{vOut}, s[{rO}:{rO+3}], 0 offen offset:24 {ST}")
if CFG["stamp"]:
    stamp()
    e("s_waitcnt vmcnt(0)")
    stamp()
    e("s_memrealtime s[74:75]")
    e("s_load_dwordx2 s[76:77], s[0:1], 40")
    e("s_waitcnt lgkmcnt(0)")
    e("s_mov_b32 s78, 0x100000")
    e("s_mov_b32 s79, 0x00020000")
    e("s_mov_b64 exec, 1")
    e(f"s_lshl_b32 s82, s2, 3")
    e(f"s_add_u32 s82, s82, s{sW}")
    e(f"s_mul_i32 s82, s82, 48")
    e("v_mov_b32 v3, s82")
    for k in range(8):
        e(f"v_mov_b32 v{4+k}, s{sStamp+2*k}")
    e("v_mov_b32 v12, s72")
    e("v_mov_b32 v13, s74")
    e("s_getreg_b32 s80, hwreg(HW_REG_XCC_ID)")
    e("v_mov_b32 v14, s80")
    e("buffer_store_dwordx4 v[4:7], v3, s[76:79], 0 offen")
    e("buffer_store_dwordx4 v[8:11], v3, s[76:79], 0 offen offset:16")
    e("buffer_store_dwordx4 v[12:15], v3, s[76:79], 0 offen offset:32")
L("L_end")
e("s_endpgm")

cm("fallback: exact online-max softmax for this wave's 32 queries (tile B), all 2048 keys")
L("L_slow")
QR = QA; S = SA[0]; vM = vT; vMn = vT + 1; vAl = vT + 2; vKo = vT + 4; vVo = vT + 5; vVa = vT + 6
e(f"s_mov_b32 s{rK}, s{sKp}")
e(f"s_mov_b32 s{rK+1}, s{sKp+1}")
e(f"s_mov_b32 s{rK+2}, {BUFSZ}")
e(f"s_mov_b32 s{rK+3}, 0x00020000")
e(f"s_mov_b32 s{rV}, s{sVp}")
e(f"s_mov_b32 s{rV+1}, s{sVp+1}")
e(f"s_mov_b32 s{rV+2}, {BUFSZ}")
e(f"s_mov_b32 s{rV+3}, 0x00020000")
e(f"buffer_load_dwordx4 v[{QR}:{QR+3}], v{vQoff}, s[{rQ}:{rQ+3}], s{sQrow} offen")
e(f"buffer_load_dwordx4 v[{QR+4}:{QR+7}], v{vQoff}, s[{rQ}:{rQ+3}], s{sQrow} offen offset:16")
e(f"v_add_u32 v{vKo}, s{sHead}, v{vQoff}")
e(f"v_lshlrev_b32 v{vVo}, 4, v{vLane}")
e(f"v_add_u32 v{vVo}, s{sHead}, v{vVo}")
e(f"v_add_u32 v{vVa}, s{sXr}, v{vSl0}")
e(f"v_cmp_eq_u32 vcc, 1, v{vOne}")
e(f"s_mov_b32 m0, s{sXr}")
e(f"v_mov_b32 v{vM}, 0xff7fffff")
e(f"v_cndmask_b32 v{vVa}, v{vSl1}, v{vVa}, vcc")
for r in range(16): e(f"v_mov_b32 v{OB+r}, 0")
e(f"v_cmp_eq_u32 vcc, 0, v{vH}")
e(f"s_mov_b32 s{sStg}, 0")
e("s_waitcnt vmcnt(0)")
e(f"v_cndmask_b32 v{QR}, 0, v{QR}, vcc")
e(f"v_cndmask_b32 v{QR+1}, 0, v{QR+1}, vcc")
L("L_slow_loop")
for i in range(4):
    e(f"buffer_load_dwordx2 v[{KF[0]+2*i}:{KF[0]+2*i+1}], v{vKo}, s[{rK}:{rK+3}], s{sStg} offen offset:{8*i}")
e(f"buffer_load_dwordx4 v{vVo}, s[{rV}:{rV+3}], s{sStg} offen lds")
e(f"buffer_load_dwordx4 v{vVo}, s[{rV}:{rV+3}], s{sStg} offen offset:1024 lds")
e("s_waitcnt vmcnt(0)")
for s in vread(VF[0], 0, vVa): e(s)
q = qk(S, KF[0], QR)
e(q[0]); e(q[1])
e("s_nop 15")
e(f"v_max3_f32 v{vMn}, v{S}, v{S+1}, v{vM}")
for r in range(2, 16, 2):
    e(f"v_max3_f32 v{vMn}, v{S+r}, v{S+r+1}, v{vMn}")
e(f"v_mov_b32 v{vAl}, v{vMn}")
e("s_nop 1")
e(f"v_permlane32_swap_b32 v{vMn}, v{vAl}")
e("s_nop 1")
e(f"v_max_f32 v{vMn}, v{vMn}, v{vAl}")
e(f"v_sub_f32 v{vAl}, v{vM}, v{vMn}")
e(f"v_mul_f32 v{vAl}, s{sC}, v{vAl}")
e(f"v_exp_f32 v{vAl}, v{vAl}")
e(f"v_mov_b32 v{vM}, v{vMn}")
for r in range(16):
    e(f"v_sub_f32 v{S+r}, v{S+r}, v{vM}")
    e(f"v_mul_f32 v{S+r}, s{sC}, v{S+r}")
    e(f"v_exp_f32 v{S+r}, v{S+r}")
for r in range(16):
    e(f"v_mul_f32 v{OB+r}, v{vAl}, v{OB+r}")
e("s_waitcnt lgkmcnt(0)")
e("s_nop 1")
P = pv(OB, VF[0], S)
e(P[0]); e(P[1])
e("s_nop 15")
e(f"s_add_u32 s{sStg}, s{sStg}, 1792")
e(f"s_cmp_lt_u32 s{sStg}, {HEADB}")
e("s_cbranch_scc1 L_slow_loop")
e(f"v_mov_b32 v{vT}, v{OB+12}")
e(f"v_mov_b32 v{vT+1}, v{OB+12}")
e("s_nop 1")
e(f"v_permlane32_swap_b32 v{vT}, v{vT+1}")
e("s_nop 1")
e(f"v_rcp_f32 v{vT+4}, v{vT+1}")
e("s_nop 0")
e(f"v_mov_b32 v{vT+5}, v{vT+4}")
e("s_branch L_fin")

out.append('.section .rodata,"a"')
out.append(".p2align 6")
out.append(f".amdhsa_kernel {NAME}_kernel")
out.append(f"  .amdhsa_next_free_vgpr {NVGPR}")
out.append("  .amdhsa_next_free_sgpr 102")
out.append(f"  .amdhsa_accum_offset {NVGPR}")
out.append("  .amdhsa_group_segment_fixed_size 0")
out.append("  .amdhsa_kernarg_size 48")
out.append("  .amdhsa_user_sgpr_count 2")
out.append("  .amdhsa_user_sgpr_kernarg_segment_ptr 1")
out.append("  .amdhsa_system_sgpr_workgroup_id_x 1")
out.append(".end_amdhsa_kernel")
open(sys.argv[1], "w").write("\n".join(out) + "\n")
```

```python
import sys, struct, math
NAME = "standalone__fused_io_aware_attn__prompt"
HEADER = open("cdna_kernels/%s.s.ref" % NAME).read().split("; Override launch")[0]

CFG = dict(stamp=False, e1=4, st="sc1", df="nt", qf="nt", xr=32, d1=0, d2=2, px=3, py=1, pe=2, qdirect=True)
for a in sys.argv[2:]:
    k, v = a.split("=")
    CFG[k] = {"True": True, "False": False, "None": None}.get(v, v)
ITERS = int(CFG.get("iters", 8))
E1 = int(CFG["e1"])
DF = CFG["df"].replace("+", " "); QF = CFG["qf"].replace("+", " "); ST = CFG["st"].replace("+", " ")

BUFSZ = 3670016
HEADB = 114688
PIECE = 7168
SLOT = 4 * PIECE
NSLOT = 4
ONES = NSLOT * SLOT
XCH = ONES + 8192
FLAG = XCH + 8 * 4096
LDS = FLAG + 2048
c = (28 ** -0.5) * math.log2(math.e)
CBITS = struct.unpack("<I", struct.pack("<f", c))[0]

vFp = 1; vOw = 2; vOl = 3
SA = [4, 20]; SB = [36, 52]; OA = 68; OB = 84
QA = 100; QB = 108
KF = [116, 124]; VF = [132, 140]
vK = 148; vV = 149; vK0 = 150; vV0 = 151; vOne = 152; vIdx = 153; vDma = 154
vLane = 155; vH = 156; vQoff = 157; vX = 158; vQl = 159; vXr = 160; vFw = 161; vFr = 162; vProg = 163; vFl = 164
vSl0 = 165; vSl1 = 166
vT = 168
NVGPR = 176
sQ = 4; sKp = 6; sVp = 8; sO = 10
rQ = 12; rD = 16; rO = 20; rK = 24; rV = 28
sW = 32; sHalf = 33; sHead = 34; sI = 35; sLim3 = 36; sNxt = 37; sDm = 38; sDmaL = 39; sStg = 40; sOff3 = 41
sC = 42
sT = 44
sXr = 50; sSo = 51; sQrow = 52; sQA = 53; sExp = 88; sFast = 90; sPf = 89; rP = 24; vPf = 167
sStamp = 56

out = []
def e(s): out.append(s if s.endswith(":") else "    " + s)
def el(l):
    for s in l: e(s)
def L(s): out.append(s + ":")
def cm(s): out.append("    ; " + s)

def qk(S, Kf, Q):
    return [f"v_mfma_f32_32x32x16_bf16 v[{S}:{S+15}], v[{Kf}:{Kf+3}], v[{Q}:{Q+3}], 0",
            f"v_mfma_f32_32x32x16_bf16 v[{S}:{S+15}], v[{Kf+4}:{Kf+7}], v[{Q+4}:{Q+7}], v[{S}:{S+15}]"]
def pv(O, Vf, S):
    return [f"v_smfmac_f32_32x32x32_bf16 v[{O}:{O+15}], v[{Vf}:{Vf+3}], v[{S}:{S+7}], v{vIdx}",
            f"v_smfmac_f32_32x32x32_bf16 v[{O}:{O+15}], v[{Vf+4}:{Vf+7}], v[{S+8}:{S+15}], v{vIdx}"]
def ex(S): return [f"v_exp_f32 v{S+i}, v{S+i}" for i in range(16)]
def kread(dst, tile, addr=vK): return [f"ds_read_b64 v[{dst+2*i}:{dst+2*i+1}], v{addr} offset:{tile*1792+8*i}" for i in range(4)]
def vread(dst, tile, addr=vV):
    return [f"ds_read_b64_tr_b16 v[{dst+2*i}:{dst+2*i+1}], v{addr} offset:{tile*1792+(i>>1)*896+(i&1)*224}" for i in range(4)]
def dma(t):
    off = ["0", "2048", "4096", f"s{sOff3}"][t]
    return [f"s_add_u32 m0, s{sDm}, {off}", f"s_add_u32 s{sSo}, s{sStg}, {off}",
            f"buffer_load_dwordx4 v{vDma}, s[{rD}:{rD+3}], s{sSo} offen {DF} lds"]
def dmal(t):
    lim = f"s{sLim3}" if t == 3 else str(ITERS - 2)
    return [f"s_cmp_lt_u32 s{sI}, {lim}", f"s_cbranch_scc0 L_nodma{t}"] + dma(t) + [f"L_nodma{t}:"]
def setstage(st): return [f"s_add_u32 s{sDm}, s{sDmaL}, {st*SLOT}", f"s_mov_b32 s{sStg}, {st*PIECE}"]
NEXT5 = setstage(1) + dma(0) + dma(1) + dma(2) + dma(3) + setstage(2) + dma(0)
def emit_m(M, fill):
    for g in range(len(M)):
        e(M[g]); el(fill[g])
nstamp = [0]
STS = CFG.get("sts", "start,q,bar,bar2,tail,t0,st,end").split(",")
def stamp(name):
    if CFG["stamp"] and name in STS:
        k = STS.index(name)
        e(f"s_memtime s[{sStamp+2*k}:{sStamp+2*k+1}]")

out.append(HEADER.rstrip())
out.append(f"; @launch grid=(256,1,1) block=(512,1,1) lds={LDS}")
out.append('.amdgcn_target "amdgcn-amd-amdhsa--gfx950"')
out.append(".text")
out.append(f".globl {NAME}_kernel")
out.append(".p2align 8")
out.append(f".type {NAME}_kernel,@function")
L(f"{NAME}_kernel")
stamp("start")
e(f"s_load_dwordx2 s[{rQ}:{rQ+1}], s[0:1], 0")
e(f"s_load_dwordx2 s[{rK}:{rK+1}], s[0:1], 8")
e(f"s_load_dwordx2 s[{rV}:{rV+1}], s[0:1], 16")
e(f"s_load_dwordx2 s[{rO}:{rO+1}], s[0:1], 24")
e("s_cmp_ge_u32 s2, 256")
e("s_cbranch_scc1 L_end")
if CFG["stamp"]:
    e(f"s_memrealtime s[72:73]")
cm("head = (b&7)*4 + (b>>6) ; q block = (b>>3)&7 ; wave w owns q tile A = w and B = w^4 of the block")
e(f"v_lshrrev_b32 v{vT}, 1, v0")
e(f"s_and_b32 s{sT}, s2, 7")
e(f"v_bfi_b32 v{vT}, 31, v0, v{vT}")
e(f"s_mul_i32 s{sT}, s{sT}, {4*HEADB}")
e(f"v_bfe_u32 v{vH}, v0, 5, 1")
e(f"s_and_b32 s{sT+1}, s2, 0xf8")
e(f"v_mul_u32_u24 v{vT}, 56, v{vT}")
e(f"s_mul_i32 s{sT+1}, s{sT+1}, 1792")
e(f"v_mad_u32_u24 v{vQl}, v{vH}, 24, v{vT}")
e(f"s_add_u32 s{sQA}, s{sT}, s{sT+1}")
e(f"v_lshrrev_b32 v1, 6, v0")
e(f"s_mov_b32 s{rQ+2}, {BUFSZ}")
e(f"s_mov_b32 s{rQ+3}, 0x00020000")
e(f"v_readfirstlane_b32 s{sW}, v1")
e(f"v_and_b32 v{vLane}, 63, v0")
e(f"s_lshr_b32 s{sT+1}, s2, 6")
e(f"s_mul_i32 s{sT+1}, s{sT+1}, {HEADB}")
e(f"s_add_u32 s{sHead}, s{sT}, s{sT+1}")
e(f"v_lshlrev_b32 v{vOl}, 4, v{vLane}")
cm("DMA lane offset: head + half*57344 + (w&1)*1024 + lane*16 ; LDS piece offset (w>>1)*7168 + (w&1)*1024")
e(f"s_lshr_b32 s{sHalf}, s{sW}, 2")
e(f"s_and_b32 s{sT+4}, s{sW}, 1")
e(f"s_mul_i32 s{sT+3}, s{sHalf}, 57344")
e(f"s_lshl_b32 s{sT+4}, s{sT+4}, 10")
e(f"s_add_u32 s{sT+3}, s{sT+3}, s{sHead}")
e(f"s_lshr_b32 s{sT+5}, s{sW}, 1")
e(f"s_add_u32 s{sT+3}, s{sT+3}, s{sT+4}")
e(f"s_mul_i32 s{sDmaL}, s{sT+5}, {PIECE}")
e(f"v_add_u32 v{vDma}, s{sT+3}, v{vOl}")
e(f"s_add_u32 s{sDmaL}, s{sDmaL}, s{sT+4}")
e(f"s_mov_b32 s{rD+2}, {BUFSZ}")
e(f"s_mov_b32 s{rD+3}, 0x00020000")
e(f"s_mov_b32 m0, s{sDmaL}")
e(f"s_bitcmp1_b32 s{sW}, 1")
e(f"s_waitcnt lgkmcnt(0)")
stamp("karg")
QD = True; PF = 0
e(f"buffer_load_dwordx4 v[{QA}:{QA+3}], v{vQl}, s[{rQ}:{rQ+3}], s{sQA} offen {QF}")
e(f"buffer_load_dwordx4 v[{QA+4}:{QA+7}], v{vQl}, s[{rQ}:{rQ+3}], s{sQA} offen offset:16 {QF}")
e(f"s_cselect_b32 s{rD}, s{rV}, s{rK}")
e(f"s_cselect_b32 s{rD+1}, s{rV+1}, s{rK+1}")
cm("K loaders fetch their first block right away, V loaders a little later")
e("s_cbranch_scc1 L_k0")
e(f"buffer_load_dwordx4 v{vDma}, s[{rD}:{rD+3}], 0 offen {DF} lds")
L("L_k0")
e(f"s_sub_u32 s{sOff3}, 6144, s{sT+4}")
e(f"s_mov_b32 s{sDm}, s{sDmaL}")
e(f"s_mov_b32 s{sStg}, 0")
cm("exchange region: mine s(sT), partner's sXr ; tile B rows")
e(f"s_lshl_b32 s{sT}, s{sW}, 12")
e(f"s_add_u32 s{sT}, s{sT}, {XCH}")
e(f"s_xor_b32 s{sT+1}, s{sW}, 4")
e(f"s_mul_i32 s{sT+2}, s{sT+1}, 1792")
e(f"s_add_u32 s{sQrow}, s{sQA}, s{sT+2}")
e(f"s_lshl_b32 s{sT+1}, s{sT+1}, 12")
e(f"s_add_u32 s{sXr}, s{sT+1}, {XCH}")
e(f"v_add_u32 v{vX}, s{sT}, v{vOl}")
e(f"v_add_u32 v{vXr}, s{sXr}, v{vOl}")
cm("vQoff = rho*56 + 24h")
e(f"s_mul_i32 s{sT}, s{sW}, 1792")
e(f"v_subrev_u32 v{vQoff}, s{sT}, v{vQl}")
cm("remaining setup in the shadow of the loads")
e(f"s_mov_b32 s{rO+2}, {BUFSZ}")
e(f"s_mov_b32 s{rO+3}, 0x00020000")
e(f"s_mov_b32 s{sC}, {hex(CBITS)}")
e(f"s_mov_b32 s{sC+1}, {hex(CBITS)}")
cm("ones region: 512 threads x 16 B of (1,0,0,0) ; progress flags = 0")
e(f"v_mov_b32 v{vT+4}, 0x3f80")
e(f"v_mov_b32 v{vT+5}, 0")
e(f"v_mov_b32 v{vT+6}, 0x3f80")
e(f"v_mov_b32 v{vT+7}, 0")
e(f"v_lshlrev_b32 v{vT+1}, 4, v0")
e(f"v_add_u32 v{vT+1}, {ONES}, v{vT+1}")
e(f"ds_write_b128 v{vT+1}, v[{vT+4}:{vT+7}]")
e(f"v_lshlrev_b32 v{vFw}, 2, v0")
e(f"v_add_u32 v{vFw}, {FLAG}, v{vFw}")
e(f"ds_write_b32 v{vFw}, v{vT+5}")
e(f"v_and_b32 v{vT+2}, 3, v{vLane}")
e(f"v_lshlrev_b32 v{vT+2}, 8, v{vT+2}")
e(f"v_lshl_add_u32 v{vT+2}, v{vLane}, 2, v{vT+2}")
e(f"s_lshl_b32 s{sT}, s{sHalf}, 10")
e(f"s_add_u32 s{sT}, s{sT}, {FLAG}")
e(f"v_add_u32 v{vFr}, s{sT}, v{vT+2}")
e(f"v_xor_b32 v{vFp}, 1024, v{vFw}")
e(f"v_mov_b32 v{vProg}, 1")
def late_first():
    e(f"s_bitcmp1_b32 s{sW}, 1")
    e("s_cbranch_scc0 L_v0")
    e(f"s_mov_b32 m0, s{sDm}")
    e("s_nop 0")
    e(f"buffer_load_dwordx4 v{vDma}, s[{rD}:{rD+3}], 0 offen {DF} lds")
    L("L_v0")
    el(dma(1))
D1 = int(CFG.get("d1", 1)); D2 = int(CFG.get("d2", 2))
if D1 == 0: late_first()
cm("K read base")
e(f"s_mul_i32 s{sT}, s{sHalf}, {2*PIECE}")
e(f"v_add_u32 v{vK0}, s{sT}, v{vQoff}")
cm("V read base: half*14336 + 7168 + (8h+r)*56 + dchunk*8")
e(f"v_bfe_u32 v{vT+1}, v{vLane}, 2, 2")
e(f"v_lshl_add_u32 v{vT+1}, v{vH}, 3, v{vT+1}")
e(f"v_mul_u32_u24 v{vT+1}, 56, v{vT+1}")
e(f"v_and_b32 v{vT+2}, 1, v{vLane}")
e(f"v_lshlrev_b32 v{vT+2}, 2, v{vT+2}")
e(f"v_bfe_u32 v{vT+3}, v{vLane}, 4, 1")
e(f"v_lshl_add_u32 v{vT+2}, v{vT+3}, 1, v{vT+2}")
e(f"v_bfe_u32 v{vT+3}, v{vLane}, 1, 1")
e(f"v_add_u32 v{vT+2}, v{vT+2}, v{vT+3}")
e(f"v_lshl_add_u32 v{vSl0}, v{vT+2}, 3, v{vT+1}")
e(f"s_add_u32 s{sT}, s{sT}, {PIECE}")
e(f"v_add_u32 v{vV0}, s{sT}, v{vSl0}")
e(f"v_cmp_ne_u32 vcc, 7, v{vT+2}")
e(f"v_mul_u32_u24 v{vSl1}, 64, v{vH}")
e(f"v_sub_u32 v{vSl1}, {ONES+224}, v{vSl1}")
e(f"v_mov_b32 v{vK}, v{vK0}")
e(f"v_cndmask_b32 v{vV0}, v{vSl1}, v{vV0}, vcc")
e(f"v_cndmask_b32 v{vOne}, 0, 1, vcc")
e(f"v_mov_b32 v{vV}, v{vV0}")
e(f"v_mov_b32 v{vIdx}, 0xdddddddd")
if D1 == 1: late_first()
if D2 == 1: el(dma(2) + dma(3))
for r in range(OA, OA+32):
    e(f"v_mov_b32 v{r}, 0")
if D1 == 2: late_first()
cm("output staging address: partner region + ql*56 + 32h")
e(f"v_lshl_add_u32 v{vOw}, v{vH}, 3, v{vQoff}")
e(f"v_add_u32 v{vOw}, s{sXr}, v{vOw}")
cm("per-lane scale for the duplicated dims (zero for h=1)")
e(f"v_cmp_eq_u32 vcc, 0, v{vH}")
e(f"v_mov_b32 v{vT}, s{sC}")
e(f"s_mov_b32 s{sI}, 0")
e(f"v_cndmask_b32 v{vT}, 0, v{vT}, vcc")
e(f"s_mov_b32 s{sExp}, 0")
e(f"s_mov_b64 s[{sFast}:{sFast+1}], -1")
e(f"s_bitcmp1_b32 s{sW}, 0")
e(f"s_cselect_b32 s{sLim3}, 0, {ITERS-2}")
if D2 == 2: el(dma(2) + dma(3))
if D1 == 3:
    e(f"s_bitcmp1_b32 s{sW}, 1")
    e("s_cbranch_scc1 L_qv")
    e("s_waitcnt vmcnt(1)")
    e("s_branch L_qk")
    L("L_qv")
    e("s_waitcnt vmcnt(0)")
    L("L_qk")
elif D2 == 3:
    e(f"s_waitcnt vmcnt(2)")
else:
    e(f"s_waitcnt vmcnt({5 if PF else 4})")
stamp("q")
if not QD:
    for i in range(4): e(f"ds_read_b64 v[{QA+2*i}:{QA+2*i+1}], v{vQl} offset:{8*i}")
cm("Q prep: bf16 -> f32, * scale*log2(e), -> bf16 (temporaries: the S buffers)")
TT = SA[0]
for hf in range(2):
    if not QD: e(f"s_waitcnt lgkmcnt({2 - hf})")
    for i in range(4*hf, 4*hf+4):
        e(f"v_lshlrev_b32 v{TT+2*i}, 16, v{QA+i}")
        e(f"v_and_b32 v{TT+2*i+1}, 0xffff0000, v{QA+i}")
    for i in range(4*hf, 4*hf+4):
        if i < 2: e(f"v_pk_mul_f32 v[{TT+2*i}:{TT+2*i+1}], v[{TT+2*i}:{TT+2*i+1}], v[{vT}:{vT+1}] op_sel_hi:[1,0]")
        else: e(f"v_pk_mul_f32 v[{TT+2*i}:{TT+2*i+1}], v[{TT+2*i}:{TT+2*i+1}], s[{sC}:{sC+1}]")
    for i in range(4*hf, 4*hf+4):
        e(f"v_cvt_pk_bf16_f32 v{QA+i}, v{TT+2*i}, v{TT+2*i+1}")
    e(f"ds_write_b128 v{vX}, v[{QA+4*hf}:{QA+4*hf+3}] offset:{1024*hf}")
stamp("prep")
if D1 == 3: late_first()
if D2 == 3: el(dma(2) + dma(3))
cm("K loaders: first block landed")
e(f"s_bitcmp1_b32 s{sW}, 1")
e("s_cbranch_scc1 L_bar")
e(f"s_waitcnt vmcnt({4 if PF else 3})")
L("L_bar")
e("s_waitcnt lgkmcnt(0)")
stamp("prebar")
e(f"s_barrier")
stamp("bar")
cm("peeled M(0): QK only")
e("s_setprio 3")
el(kread(KF[0], 0))
e(f"ds_read_b128 v[{QB}:{QB+3}], v{vXr}")
e(f"ds_read_b128 v[{QB+4}:{QB+7}], v{vXr} offset:1024")
e(f"s_waitcnt lgkmcnt(2)")
q = qk(SA[0], KF[0], QA)
e(q[0]); e(q[1])
e(f"s_waitcnt lgkmcnt(0)")
q = qk(SB[0], KF[0], QB)
e(q[0])
e(f"s_cmp_eq_u32 s{sHalf}, 0")
e(q[1])
e("s_cbranch_scc0 L_firstY")
cm("waves 0-3: E(0), then the rest of stage 0 is published")
e("s_setprio 1")
e("s_nop 5")
stamp("e0")
el(ex(SA[0]) + ex(SB[0]))
e("s_setprio 3")
e("s_waitcnt vmcnt(0)")
e("s_barrier")
stamp("bar2")
el(kread(KF[1], 1) + vread(VF[0], 0))
cm("peeled M(1) of waves 0-3: carries their loads of stage 1")
el(setstage(1) + dma(0))
e("s_waitcnt lgkmcnt(0)")
M = qk(SA[1], KF[1], QA) + pv(OA, VF[0], SA[0]) + qk(SB[1], KF[1], QB) + pv(OB, VF[0], SB[0])
kr = kread(KF[0], 2); vr = vread(VF[1], 1)
emit_m(M, [[vr[0]] + dma(1), [vr[1]], [vr[2]] + dma(2), [vr[3]] + dma(3), [kr[0]] + setstage(2), [kr[1]] + dma(0), [kr[2]] + dma(1),
           [kr[3], f"s_mov_b32 s{sNxt}, {SLOT}", f"s_cmp_eq_u32 s{sI}, 1"]])
e("s_branch L_E1")
L("L_firstY")
el(NEXT5)
e("s_waitcnt vmcnt(5)")
e("s_barrier")
stamp("bar2")
el(kread(KF[1], 1) + vread(VF[0], 0))
e("s_branch L_E0")

def mseg(t):
    p = t & 1
    M = qk(SA[p], KF[p], QA) + pv(OA, VF[1-p], SA[1-p]) + qk(SB[p], KF[p], QB) + pv(OB, VF[1-p], SB[1-p])
    kr = kread(KF[1-p], (t + 1) & 3); vr = vread(VF[p], t)
    fill = [[] for _ in range(8)]
    cm(f"M({t})")
    e("s_setprio 3")
    if t == 0:
        e(f"v_mad_u32_u24 v{vV}, s{sNxt}, v{vOne}, v{vV0}")
    e("s_waitcnt lgkmcnt(0)")
    for i in range(4): fill[i] += [vr[i]]
    if t == 3:
        fill[0] = ["s_waitcnt vmcnt(3)", f"s_cmp_lt_u32 s{sI}, {ITERS-2}", "s_cbranch_scc1 L_w2", "s_waitcnt vmcnt(0)", "L_w2:",
                   f"ds_add_u32 v{vFw}, v{vProg}"] + fill[0]
        fill[1] += [f"s_add_u32 s{sExp}, s{sExp}, 1", f"v_add_u32 v{vK}, s{sNxt}, v{vK0}"]
        fill[2] += dmal(t)
        fill[3] += [f"ds_read_b32 v{vFl}, v{vFr}"]
        fill[5] += ["s_waitcnt lgkmcnt(0)", f"v_cmp_gt_u32 vcc, s{sExp}, v{vFl}", f"s_cbranch_vccnz L_poll", f"L_pollok:", kr[0]]
        fill[6] += [kr[1], kr[2]]
        fill[7] += [kr[3]]
    else:
        for i in range(4): fill[4+i] += [kr[i]]
        fill[5] += dmal(t)
    if t == 0:
        fill[1] += [f"s_add_u32 s{sT}, s{sI}, 2", f"s_and_b32 s{sT}, s{sT}, 3", f"s_mul_i32 s{sT}, s{sT}, {SLOT}"]
        fill[2] += [f"s_add_u32 s{sDm}, s{sT}, s{sDmaL}", f"s_add_u32 s{sStg}, s{sStg}, {PIECE}"]
        if ITERS > 8:
            fill[3] += [f"s_cmp_eq_u32 s{sStg}, {8*PIECE}", f"s_cselect_b32 s{sStg}, 0, s{sStg}"]
    if t == 1:
        fill[6] += [f"s_add_u32 s{sT}, s{sI}, 1", f"s_and_b32 s{sT}, s{sT}, 3", f"s_mul_i32 s{sNxt}, s{sT}, {SLOT}"]
        fill[7] += [f"s_cmp_eq_u32 s{sI}, {ITERS-1}"]
    if t == 3:
        fill[6] += [f"s_add_u32 s{sI}, s{sI}, 1"]
    emit_m(M, fill)
def eseg(E, name):
    cm(name)
    e("s_setprio 0")
    el(E[:E1])
    e("s_setprio 1")
    el(E[E1:])

out.append(".p2align 6")
L("L_loop")
mseg(0)
L("L_E0")
eseg(ex(SA[0]) + ex(SB[0]), "E(0)")
mseg(1)
L("L_E1")
eseg(ex(SA[1]) + ex(SB[1]), "E(1)")
e("s_cbranch_scc1 L_tail")
mseg(2)
eseg(ex(SA[0]) + ex(SB[0]), "E(2)")
mseg(3)
eseg(ex(SA[1]) + ex(SB[1]), "E(3)")
e("s_branch L_loop")
L(f"L_poll")
e(f"ds_read_b32 v{vFl}, v{vFr}")
e("s_waitcnt lgkmcnt(0)")
e(f"v_cmp_gt_u32 vcc, s{sExp}, v{vFl}")
e(f"s_cbranch_vccnz L_poll")
e(f"s_branch L_pollok")

L("L_tail")
cm("last two key tiles (30, 31): q tile A first, so that its partial sums can be handed over early")
e("s_setprio 3")
stamp("tail")
e("s_waitcnt lgkmcnt(0)")
kr = kread(KF[1], 3); v30 = vread(VF[0], 2); v31 = vread(VF[1], 3)
M = qk(SA[0], KF[0], QA) + pv(OA, VF[1], SA[1]) + pv(OB, VF[1], SB[1]) + qk(SA[1], KF[1], QA)
emit_m(M, [kr[0:2], kr[2:4], v30[0:2], v30[2:4], [], ["s_waitcnt lgkmcnt(4)"] + v31[0:2], v31[2:4], []])
stamp("t2")
eseg(ex(SA[0]) + ex(SA[1]), "E'(30)")
e("s_setprio 3")
stamp("t3")
e("s_waitcnt lgkmcnt(0)")
xw = [f"ds_write_b128 v{vX}, v[{OA+4*i}:{OA+4*i+3}] offset:{1024*i}" for i in range(4)]
M = pv(OA, VF[0], SA[0]) + pv(OA, VF[1], SA[1]) + qk(SB[0], KF[0], QB) + qk(SB[1], KF[1], QB)
WM = CFG.get("wm", "a")
addf = [f"ds_add_u32 v{vFw}, v{vProg}"]
if WM == "a":
    emit_m(M, [[], [], [], [], ["s_nop 7", "s_nop 1"], xw[0:1], xw[1:3], xw[3:4] + addf + [f"s_add_u32 s{sExp}, s{sExp}, 1"]])
    xw2 = []
elif WM == "b":
    emit_m(M, [[], [], [], [], ["s_nop 7", "s_nop 1"], xw[0:2], xw[2:4] + addf, [f"s_add_u32 s{sExp}, s{sExp}, 1", "s_nop 1"]])
    xw2 = []
elif WM == "c":
    emit_m(M, [[], [], [], [], ["s_nop 7", "s_nop 1"], xw[0:1], xw[1:2], xw[2:3] + [f"s_add_u32 s{sExp}, s{sExp}, 1", "s_nop 1"]])
    xw2 = xw[3:4] + addf
R = SA[0]; P0 = SA[1]
def xreads():
    e(f"ds_read_b32 v{vFl}, v{vFp}")
    for i in (3, 0, 1, 2):
        e(f"ds_read_b128 v[{R+4*i}:{R+4*i+3}], v{vXr} offset:{1024*i}")
E = ex(SB[0]) + ex(SB[1])
PB = pv(OB, VF[0], SB[0]) + pv(OB, VF[1], SB[1])
stamp("t4")
e(f"s_mov_b32 s{sT+1}, 0x71800000")
e(f"s_mov_b32 s{sSo}, 0x207")
e(f"s_cmp_eq_u32 s{sHalf}, 0")
e("s_cbranch_scc0 L_lastY")
eseg(E, "E'(31), waves 0-3")
stamp("t0")
e("s_setprio 3")
e(PB[0]); el(xw2); e(PB[1]); e(PB[2]); e(PB[3])
e("s_branch L_xch_spin")
L("L_lastY")
cm("E'(31), waves 4-7")
e("s_setprio 0")
for i, s in enumerate(E):
    if i == E1: e(f"s_setprio {CFG['pe']}")
    if i == 10:
        e(PB[0]); el(xw2)
    if i == 18:
        e(PB[1])
        if int(CFG["xr"]) < 32: xreads()
    if i == 27: e(PB[2])
    e(s)
stamp("t0")
e("s_nop 1")
e(PB[3])
e(f"s_setprio {CFG['py']}")
if int(CFG["xr"]) >= 32: xreads()
e("s_waitcnt lgkmcnt(4)")
e(f"v_cmp_gt_u32 vcc, s{sExp}, v{vFl}")
e("s_cbranch_vccnz L_xch_spin")
e("s_nop 7")
L("L_xch_ok")
stamp("xok")
e(f"s_waitcnt lgkmcnt(3)")
def padd(r): e(f"v_pk_add_f32 v[{OB+r}:{OB+r+1}], v[{OB+r}:{OB+r+1}], v[{R+r}:{R+r+1}]")
padd(12)
padd(14)
cm("1/l (valid in lanes 32..63) -> all lanes")
e(f"v_rcp_f32 v{vT}, v{OB+12}")
e(f"s_waitcnt lgkmcnt(2)")
padd(0)
e(f"v_mov_b32 v{vT+4}, v{vT}")
padd(2)
e(f"s_waitcnt lgkmcnt(1)")
padd(4)
e(f"v_permlane32_swap_b32 v{vT}, v{vT+4}")
padd(6)
e(f"s_waitcnt lgkmcnt(0)")
padd(8)
padd(10)
cm("safety check of the unshifted exponentials, part 1: l in [1, 2^100]")
e(f"v_cmp_nle_f32 vcc, 1.0, v{OB+12}")
e(f"v_cmp_nge_f32 s[{sT+2}:{sT+3}], s{sT+1}, v{OB+12}")
L("L_fin")
stamp("fin")
def pmul(r): e(f"v_pk_mul_f32 v[{OB+r}:{OB+r+1}], v[{OB+r}:{OB+r+1}], v[{vT+4}:{vT+5}] op_sel_hi:[1,0]")
for r in range(0, 8, 2): pmul(r)
for r in range(0, 8, 2): e(f"v_cvt_pk_bf16_f32 v{P0+r//2}, v{OB+r}, v{OB+r+1}")
e(f"ds_write_b64 v{vOw}, v[{P0}:{P0+1}]")
e(f"ds_write_b64 v{vOw}, v[{P0+2}:{P0+3}] offset:8")
for r in range(8, 16, 2): pmul(r)
for r in range(8, 16, 2): e(f"v_cvt_pk_bf16_f32 v{P0+r//2}, v{OB+r}, v{OB+r+1}")
e(f"ds_write_b64 v{vOw}, v[{P0+4}:{P0+5}] offset:16")
e("s_mov_b32 exec_hi, 0")
e(f"ds_write_b64 v{vOw}, v[{P0+6}:{P0+7}] offset:24")
e("s_mov_b32 exec_hi, -1")
e(f"ds_read_b128 v[{P0+8}:{P0+11}], v{vXr}")
e(f"ds_read_b128 v[{P0+12}:{P0+15}], v{vXr} offset:1024")
stamp("stg")
e("s_setprio 0")
cm("part 2: every output finite")
e(f"s_or_b64 vcc, vcc, s[{sT+2}:{sT+3}]")
e(f"v_pk_add_f32 v[{vT+2}:{vT+3}], v[{OB}:{OB+1}], v[{OB+2}:{OB+3}]")
e(f"v_pk_add_f32 v[{vT+6}:{vT+7}], v[{OB+4}:{OB+5}], v[{OB+6}:{OB+7}]")
e(f"v_pk_add_f32 v[{R}:{R+1}], v[{OB+8}:{OB+9}], v[{OB+10}:{OB+11}]")
e(f"v_pk_add_f32 v[{R+2}:{R+3}], v[{OB+12}:{OB+13}], v[{OB+14}:{OB+15}]")
e(f"v_pk_add_f32 v[{vT+2}:{vT+3}], v[{vT+2}:{vT+3}], v[{vT+6}:{vT+7}]")
e(f"v_pk_add_f32 v[{R}:{R+1}], v[{R}:{R+1}], v[{R+2}:{R+3}]")
e(f"s_mov_b32 vcc_lo, 0")
e(f"v_pk_add_f32 v[{vT+2}:{vT+3}], v[{vT+2}:{vT+3}], v[{R}:{R+1}]")
e(f"s_and_b64 vcc, vcc, s[{sFast}:{sFast+1}]")
e(f"v_add_f32 v{vT+2}, v{vT+2}, v{vT+3}")
e(f"v_cmp_class_f32 s[{sT+4}:{sT+5}], v{vT+2}, s{sSo}")
e("s_nop 0")
e(f"s_and_b64 s[{sT+4}:{sT+5}], s[{sT+4}:{sT+5}], s[{sFast}:{sFast+1}]")
e(f"s_or_b64 vcc, vcc, s[{sT+4}:{sT+5}]")
e("s_cbranch_vccnz L_slow")
e("s_waitcnt lgkmcnt(1)")
e(f"buffer_store_dwordx4 v[{P0+8}:{P0+11}], v{vOl}, s[{rO}:{rO+3}], s{sQrow} offen {ST}")
e("s_mov_b32 exec_hi, 0xffff")
e("s_waitcnt lgkmcnt(0)")
e(f"buffer_store_dwordx4 v[{P0+12}:{P0+15}], v{vOl}, s[{rO}:{rO+3}], s{sQrow} offen offset:1024 {ST}")
if CFG.get("reveal"):
    e("s_memtime s[92:93]")
    e("s_waitcnt lgkmcnt(0)")
    e(f"s_and_b32 s94, s2, {int(CFG.get('rmask', 255))}")
    e(f"s_cmp_eq_u32 s94, {int(CFG.get('rwg', 133))}")
    e("s_cbranch_scc0 L_end")
    if CFG["reveal"] == "end":
        e(f"s_sub_u32 s94, s92, s{sStamp}")
        e(f"s_sub_u32 s94, s94, {int(CFG.get('roff', 24000))}")
        e(f"s_max_i32 s94, s94, 0")
    else:
        e(f"s_sub_u32 s94, s{sStamp+2}, s{sStamp}")
    e("s_lshl_b32 s94, s94, 4")
    L("L_rev")
    e("s_memtime s[96:97]")
    e("s_waitcnt lgkmcnt(0)")
    e("s_sub_u32 s96, s96, s92")
    e("s_cmp_lt_u32 s96, s94")
    e("s_cbranch_scc1 L_rev")
    e("s_branch L_end")
if CFG["stamp"]:
    stamp("st")
    e("s_waitcnt vmcnt(0)")
    stamp("end")
    e("s_memrealtime s[74:75]")
    e("s_load_dwordx2 s[76:77], s[0:1], 40")
    e("s_waitcnt lgkmcnt(0)")
    e("s_mov_b32 s78, 0x100000")
    e("s_mov_b32 s79, 0x00020000")
    e("s_mov_b64 exec, 1")
    e(f"s_lshl_b32 s82, s2, 3")
    e(f"s_add_u32 s82, s82, s{sW}")
    e(f"s_mul_i32 s82, s82, 48")
    e("v_mov_b32 v3, s82")
    for k in range(8):
        e(f"v_mov_b32 v{4+k}, s{sStamp+2*k}")
    e("v_mov_b32 v12, s72")
    e("v_mov_b32 v13, s74")
    e("s_getreg_b32 s80, hwreg(HW_REG_XCC_ID)")
    e("v_mov_b32 v14, s80")
    e("buffer_store_dwordx4 v[4:7], v3, s[76:79], 0 offen")
    e("buffer_store_dwordx4 v[8:11], v3, s[76:79], 0 offen offset:16")
    e("buffer_store_dwordx4 v[12:15], v3, s[76:79], 0 offen offset:32")
L("L_end")
e("s_endpgm")
cm("wait for the partner's partial sums")
L("L_xch_spin")
e(f"ds_read_b32 v{vFl}, v{vFp}")
e("s_waitcnt lgkmcnt(0)")
e(f"v_cmp_gt_u32 vcc, s{sExp}, v{vFl}")
e("s_cbranch_vccnz L_xch_spin")
xreads()
e(f"s_setprio {CFG['px']}")
e("s_nop 1")
e("s_branch L_xch_ok")

cm("fallback: exact online-max softmax for this wave's 32 queries (tile B), all 2048 keys")
L("L_slow")
e("s_waitcnt lgkmcnt(0)")
e(f"s_mov_b64 s[{sFast}:{sFast+1}], 0")
QR = QA; S = SA[0]; vM = vT; vMn = vT + 1; vAl = vT + 2; vKo = vT + 4; vVo = vT + 5; vVa = vT + 6
e(f"s_mov_b32 s{rK+2}, {BUFSZ}")
e(f"s_mov_b32 s{rK+3}, 0x00020000")
e(f"s_mov_b32 s{rV+2}, {BUFSZ}")
e(f"s_mov_b32 s{rV+3}, 0x00020000")
e(f"buffer_load_dwordx4 v[{QR}:{QR+3}], v{vQoff}, s[{rQ}:{rQ+3}], s{sQrow} offen")
e(f"buffer_load_dwordx4 v[{QR+4}:{QR+7}], v{vQoff}, s[{rQ}:{rQ+3}], s{sQrow} offen offset:16")
e(f"v_add_u32 v{vKo}, s{sHead}, v{vQoff}")
e(f"v_add_u32 v{vVo}, s{sHead}, v{vOl}")
e(f"v_add_u32 v{vVa}, s{sXr}, v{vSl0}")
e(f"v_cmp_eq_u32 vcc, 1, v{vOne}")
e(f"s_mov_b32 m0, s{sXr}")
e(f"v_mov_b32 v{vM}, 0xff7fffff")
e(f"v_cndmask_b32 v{vVa}, v{vSl1}, v{vVa}, vcc")
for r in range(16): e(f"v_mov_b32 v{OB+r}, 0")
e(f"v_cmp_eq_u32 vcc, 0, v{vH}")
e(f"s_mov_b32 s{sStg}, 0")
e("s_waitcnt vmcnt(0)")
e(f"v_cndmask_b32 v{QR}, 0, v{QR}, vcc")
e(f"v_cndmask_b32 v{QR+1}, 0, v{QR+1}, vcc")
L("L_slow_loop")
for i in range(4):
    e(f"buffer_load_dwordx2 v[{KF[0]+2*i}:{KF[0]+2*i+1}], v{vKo}, s[{rK}:{rK+3}], s{sStg} offen offset:{8*i}")
e(f"buffer_load_dwordx4 v{vVo}, s[{rV}:{rV+3}], s{sStg} offen lds")
e(f"buffer_load_dwordx4 v{vVo}, s[{rV}:{rV+3}], s{sStg} offen offset:1024 lds")
e("s_waitcnt vmcnt(0)")
el(vread(VF[0], 0, vVa))
q = qk(S, KF[0], QR)
e(q[0]); e(q[1])
e("s_nop 15")
e(f"v_max3_f32 v{vMn}, v{S}, v{S+1}, v{vM}")
for r in range(2, 16, 2):
    e(f"v_max3_f32 v{vMn}, v{S+r}, v{S+r+1}, v{vMn}")
e(f"v_mov_b32 v{vAl}, v{vMn}")
e("s_nop 1")
e(f"v_permlane32_swap_b32 v{vMn}, v{vAl}")
e("s_nop 1")
e(f"v_max_f32 v{vMn}, v{vMn}, v{vAl}")
e(f"v_sub_f32 v{vAl}, v{vM}, v{vMn}")
e(f"v_mul_f32 v{vAl}, s{sC}, v{vAl}")
e(f"v_exp_f32 v{vAl}, v{vAl}")
e(f"v_mov_b32 v{vM}, v{vMn}")
for r in range(16):
    e(f"v_sub_f32 v{S+r}, v{S+r}, v{vM}")
    e(f"v_mul_f32 v{S+r}, s{sC}, v{S+r}")
    e(f"v_exp_f32 v{S+r}, v{S+r}")
for r in range(16):
    e(f"v_mul_f32 v{OB+r}, v{vAl}, v{OB+r}")
e("s_waitcnt lgkmcnt(0)")
e("s_nop 1")
P = pv(OB, VF[0], S)
e(P[0]); e(P[1])
e("s_nop 15")
e(f"s_add_u32 s{sStg}, s{sStg}, 1792")
e(f"s_cmp_lt_u32 s{sStg}, {HEADB}")
e("s_cbranch_scc1 L_slow_loop")
e(f"v_rcp_f32 v{vT}, v{OB+12}")
e("s_nop 0")
e(f"v_mov_b32 v{vT+4}, v{vT}")
e("s_nop 1")
e(f"v_permlane32_swap_b32 v{vT}, v{vT+4}")
e("s_nop 1")
e("s_branch L_fin")

out.append('.section .rodata,"a"')
out.append(".p2align 6")
out.append(f".amdhsa_kernel {NAME}_kernel")
out.append(f"  .amdhsa_next_free_vgpr {NVGPR}")
out.append("  .amdhsa_next_free_sgpr 102")
out.append(f"  .amdhsa_accum_offset {NVGPR}")
out.append("  .amdhsa_group_segment_fixed_size 0")
out.append("  .amdhsa_kernarg_size 48")
out.append("  .amdhsa_user_sgpr_count 2")
out.append("  .amdhsa_user_sgpr_kernarg_segment_ptr 1")
out.append("  .amdhsa_system_sgpr_workgroup_id_x 1")
out.append(".end_amdhsa_kernel")
open(sys.argv[1], "w").write("\n".join(out) + "\n")
```

```python
import sys, struct, math
NAME = "standalone__fused_io_aware_attn__prompt"
HEADER = open("cdna_kernels/%s.s.ref" % NAME).read().split("; Override launch")[0]

CFG = dict(stamp=False, e1=7, st="sc1", df="nt", qf="nt", xr="0", d1=0, d2=1, px=3, py=1, pe=2, qdirect=True)
for a in sys.argv[2:]:
    k, v = a.split("=")
    CFG[k] = {"True": True, "False": False, "None": None}.get(v, v)
ITERS = int(CFG.get("iters", 8))
E1 = int(CFG["e1"])
DF = CFG["df"].replace("+", " "); QF = CFG["qf"].replace("+", " "); ST = CFG["st"].replace("+", " ")

BUFSZ = 3670016
HEADB = 114688
PIECE = 7168
SLOT = 4 * PIECE
NSLOT = 4
ONES = NSLOT * SLOT
XCH = ONES + 8192
FLAG = XCH + 8 * 4096
LDS = FLAG + 2048
c = (28 ** -0.5) * math.log2(math.e)
CBITS = struct.unpack("<I", struct.pack("<f", c))[0]

vFp = 1; vOw = 2; vOl = 3
SA = [4, 20]; SB = [36, 52]; OA = 68; OB = 84
QA = 100; QB = 108
KF = [116, 124]; VF = [132, 140]
vK = 148; vV = 149; vK0 = 150; vV0 = 151; vOne = 152; vIdx = 153; vDma = 154
vLane = 155; vH = 156; vQoff = 157; vX = 158; vQl = 159; vXr = 160; vFw = 161; vFr = 162; vProg = 163; vFl = 164
vSl0 = 165; vSl1 = 166
vT = 168
NVGPR = 176
sQ = 4; sKp = 6; sVp = 8; sO = 10
rQ = 12; rD = 16; rO = 20; rK = 24; rV = 28
sW = 32; sHalf = 33; sHead = 34; sI = 35; sLim3 = 36; sNxt = 37; sDm = 38; sDmaL = 39; sStg = 40; sOff3 = 41
sC = 42
sT = 44
sXr = 50; sSo = 51; sQrow = 52; sQA = 53; sExp = 88; sFast = 90; sPf = 89; rP = 24; vPf = 167
sStamp = 56

out = []
def e(s): out.append(s if s.endswith(":") else "    " + s)
def el(l):
    for s in l: e(s)
def L(s): out.append(s + ":")
def cm(s): out.append("    ; " + s)

def qk(S, Kf, Q):
    return [f"v_mfma_f32_32x32x16_bf16 v[{S}:{S+15}], v[{Kf}:{Kf+3}], v[{Q}:{Q+3}], 0",
            f"v_mfma_f32_32x32x16_bf16 v[{S}:{S+15}], v[{Kf+4}:{Kf+7}], v[{Q+4}:{Q+7}], v[{S}:{S+15}]"]
def pv(O, Vf, S):
    return [f"v_smfmac_f32_32x32x32_bf16 v[{O}:{O+15}], v[{Vf}:{Vf+3}], v[{S}:{S+7}], v{vIdx}",
            f"v_smfmac_f32_32x32x32_bf16 v[{O}:{O+15}], v[{Vf+4}:{Vf+7}], v[{S+8}:{S+15}], v{vIdx}"]
def ex(S): return [f"v_exp_f32 v{S+i}, v{S+i}" for i in range(16)]
def kread(dst, tile, addr=vK): return [f"ds_read_b64 v[{dst+2*i}:{dst+2*i+1}], v{addr} offset:{tile*1792+8*i}" for i in range(4)]
def vread(dst, tile, addr=vV):
    return [f"ds_read_b64_tr_b16 v[{dst+2*i}:{dst+2*i+1}], v{addr} offset:{tile*1792+(i>>1)*896+(i&1)*224}" for i in range(4)]
def dma(t):
    off = ["0", "2048", "4096", f"s{sOff3}"][t]
    return [f"s_add_u32 m0, s{sDm}, {off}", f"s_add_u32 s{sSo}, s{sStg}, {off}",
            f"buffer_load_dwordx4 v{vDma}, s[{rD}:{rD+3}], s{sSo} offen {DF} lds"]
def dmal(t):
    lim = f"s{sLim3}" if t == 3 else str(ITERS - 2)
    return [f"s_cmp_lt_u32 s{sI}, {lim}", f"s_cbranch_scc0 L_nodma{t}"] + dma(t) + [f"L_nodma{t}:"]
def setstage(st): return [f"s_add_u32 s{sDm}, s{sDmaL}, {st*SLOT}", f"s_mov_b32 s{sStg}, {st*PIECE}"]
NEXT5 = setstage(1) + dma(0) + dma(1) + dma(2) + dma(3) + setstage(2) + dma(0)
def emit_m(M, fill):
    for g in range(len(M)):
        e(M[g]); el(fill[g])
nj = [0]
def jit():
    if not CFG.get("jit"): return []
    k = nj[0]; nj[0] += 1
    return ["s_cselect_b32 s99, 1, 0", "s_memtime s[96:97]", "s_waitcnt lgkmcnt(0)", f"s_mul_i32 s96, s96, {2654435761 & 0x7fffffff}", f"s_add_u32 s96, s96, s{sW}",
            "s_mul_i32 s96, s96, 40503", "s_lshr_b32 s96, s96, 26", "s_mul_i32 s97, s96, s96", "s_lshr_b32 s96, s97, 6", f"L_jit{k}:", "s_sleep 1", "s_sub_u32 s96, s96, 1",
            "s_cmp_gt_i32 s96, 0", f"s_cbranch_scc1 L_jit{k}", "s_cmp_eq_u32 s99, 1"]
IPF = int(CFG.get("ipf", 0))
npad = [0]
def pad(alt=None):
    if IPF and npad[0] < 8:
        k = npad[0]; npad[0] += 1
        return [f"L_pad{k}:", "s_cbranch_execz L_padret"]
    return [alt] if alt else []
nstamp = [0]
STS = CFG.get("sts", "start,q,bar,bar2,tail,t0,st,end").split(",")
def stamp(name):
    if CFG["stamp"] and name in STS:
        k = STS.index(name)
        e(f"s_memtime s[{sStamp+2*k}:{sStamp+2*k+1}]")

out.append(HEADER.rstrip())
out.append(f"; @launch grid=(256,1,1) block=(512,1,1) lds={LDS}")
out.append('.amdgcn_target "amdgcn-amd-amdhsa--gfx950"')
out.append(".text")
out.append(f".globl {NAME}_kernel")
out.append(".p2align 8")
out.append(f".type {NAME}_kernel,@function")
L(f"{NAME}_kernel")
stamp("start")
e(f"s_load_dwordx2 s[{rQ}:{rQ+1}], s[0:1], 0")
e(f"s_load_dwordx2 s[{rK}:{rK+1}], s[0:1], 8")
e(f"s_load_dwordx2 s[{rV}:{rV+1}], s[0:1], 16")
e(f"s_load_dwordx2 s[{rO}:{rO+1}], s[0:1], 24")
e("s_cmp_ge_u32 s2, 256")
e("s_cbranch_scc1 L_end")
if CFG["stamp"]:
    e(f"s_memrealtime s[72:73]")
CPF = int(CFG.get("cpf", 0))
if CPF:
    cm("one wave touches the kernel's own code lines (128 B apart) so that later instruction fetches hit in L2")
    e(f"v_subrev_u32 v{vT+2}, {CPF*64}, v0")
    e(f"s_getpc_b64 s[{sT}:{sT+1}]")
    L("L_pc")
    e(f"v_cmp_gt_u32 vcc, {int(CFG.get('ncpf', 38))}, v{vT+2}")
    e(f"s_and_saveexec_b64 s[{sT+2}:{sT+3}], vcc")
    e("s_cbranch_execz L_nocpf")
    e(f"v_lshlrev_b32 v{vT+2}, 7, v{vT+2}")
    e(f"v_mov_b32 v{vT+3}, s{sT+1}")
    e(f"v_add_co_u32 v{vT+2}, vcc, s{sT}, v{vT+2}")
    e("s_nop 1")
    e(f"v_addc_co_u32 v{vT+3}, vcc, 0, v{vT+3}, vcc")
    e(f"global_load_dword v167, v[{vT+2}:{vT+3}], off {CFG.get('cf','')}")
    L("L_nocpf")
    e(f"s_mov_b64 exec, s[{sT+2}:{sT+3}]")
cm("head = (b&7)*4 + (b>>6) ; q block = (b>>3)&7 ; wave w owns q tile A = w and B = w^4 of the block")
e(f"v_lshrrev_b32 v{vT}, 1, v0")
e(f"s_and_b32 s{sT}, s2, 7")
e(f"v_bfi_b32 v{vT}, 31, v0, v{vT}")
e(f"s_mul_i32 s{sT}, s{sT}, {4*HEADB}")
e(f"v_bfe_u32 v{vH}, v0, 5, 1")
e(f"s_and_b32 s{sT+1}, s2, 0xf8")
e(f"v_mul_u32_u24 v{vT}, 56, v{vT}")
e(f"s_mul_i32 s{sT+1}, s{sT+1}, 1792")
e(f"v_mad_u32_u24 v{vQl}, v{vH}, 24, v{vT}")
e(f"s_add_u32 s{sQA}, s{sT}, s{sT+1}")
e(f"v_lshrrev_b32 v1, 6, v0")
e(f"s_mov_b32 s{rQ+2}, {BUFSZ}")
e(f"s_mov_b32 s{rQ+3}, 0x00020000")
e(f"v_readfirstlane_b32 s{sW}, v1")
e(f"v_and_b32 v{vLane}, 63, v0")
e(f"s_lshr_b32 s{sT+1}, s2, 6")
e(f"s_mul_i32 s{sT+1}, s{sT+1}, {HEADB}")
e(f"s_add_u32 s{sHead}, s{sT}, s{sT+1}")
e(f"v_lshlrev_b32 v{vOl}, 4, v{vLane}")
cm("DMA lane offset: head + half*57344 + (w&1)*1024 + lane*16 ; LDS piece offset (w>>1)*7168 + (w&1)*1024")
e(f"s_lshr_b32 s{sHalf}, s{sW}, 2")
e(f"s_and_b32 s{sT+4}, s{sW}, 1")
e(f"s_mul_i32 s{sT+3}, s{sHalf}, 57344")
e(f"s_lshl_b32 s{sT+4}, s{sT+4}, 10")
e(f"s_add_u32 s{sT+3}, s{sT+3}, s{sHead}")
e(f"s_lshr_b32 s{sT+5}, s{sW}, 1")
e(f"s_add_u32 s{sT+3}, s{sT+3}, s{sT+4}")
e(f"s_mul_i32 s{sDmaL}, s{sT+5}, {PIECE}")
e(f"v_add_u32 v{vDma}, s{sT+3}, v{vOl}")
e(f"s_add_u32 s{sDmaL}, s{sDmaL}, s{sT+4}")
e(f"s_mov_b32 s{rD+2}, {BUFSZ}")
e(f"s_mov_b32 s{rD+3}, 0x00020000")
QD = CFG.get("qdirect"); PF = 0
if QD:
    e(f"s_mov_b32 m0, s{sDmaL}")
else:
    e(f"s_lshl_b32 s{sT}, s{sW}, 12")
    e(f"s_add_u32 m0, s{sT}, {XCH+2048}")
    e(f"s_mul_i32 s{sT}, s{sW}, 1792")
    e(f"s_add_u32 s{sT+2}, s{sT}, s{sQA}")
e(f"s_bitcmp1_b32 s{sW}, 1")
e(f"s_waitcnt lgkmcnt(0)")
stamp("karg")
if QD:
    e(f"buffer_load_dwordx4 v[{QA}:{QA+3}], v{vQl}, s[{rQ}:{rQ+3}], s{sQA} offen {QF}")
    e(f"buffer_load_dwordx4 v[{QA+4}:{QA+7}], v{vQl}, s[{rQ}:{rQ+3}], s{sQA} offen offset:16 {QF}")
else:
    e(f"buffer_load_dwordx4 v{vOl}, s[{rQ}:{rQ+3}], s{sT+2} offen {QF} lds")
    e("s_mov_b32 exec_hi, 0xffff")
    e(f"buffer_load_dwordx4 v{vOl}, s[{rQ}:{rQ+3}], s{sT+2} offen offset:1024 {QF} lds")
    e("s_mov_b32 exec_hi, -1")
    e(f"s_mov_b32 m0, s{sDmaL}")
e(f"s_cselect_b32 s{rD}, s{rV}, s{rK}")
e(f"s_cselect_b32 s{rD+1}, s{rV+1}, s{rK+1}")
cm("K loaders fetch their first block right away, V loaders a little later")
e("s_cbranch_scc1 L_k0")
e(f"buffer_load_dwordx4 v{vDma}, s[{rD}:{rD+3}], 0 offen {DF} lds")
L("L_k0")
e(f"s_sub_u32 s{sOff3}, 6144, s{sT+4}")
e(f"s_mov_b32 s{sDm}, s{sDmaL}")
e(f"s_mov_b32 s{sStg}, 0")
cm("exchange region: mine s(sT), partner's sXr ; tile B rows")
e(f"s_lshl_b32 s{sT}, s{sW}, 12")
e(f"s_add_u32 s{sT}, s{sT}, {XCH}")
e(f"s_xor_b32 s{sT+1}, s{sW}, 4")
e(f"s_mul_i32 s{sT+2}, s{sT+1}, 1792")
e(f"s_add_u32 s{sQrow}, s{sQA}, s{sT+2}")
e(f"s_lshl_b32 s{sT+1}, s{sT+1}, 12")
e(f"s_add_u32 s{sXr}, s{sT+1}, {XCH}")
e(f"v_add_u32 v{vX}, s{sT}, v{vOl}")
e(f"v_add_u32 v{vXr}, s{sXr}, v{vOl}")
cm("vQoff = rho*56 + 24h")
e(f"s_mul_i32 s{sT}, s{sW}, 1792")
e(f"v_subrev_u32 v{vQoff}, s{sT}, v{vQl}")
if not QD:
    e(f"s_lshl_b32 s{sT}, s{sW}, 12")
    e(f"s_add_u32 s{sT}, s{sT}, {XCH+2048}")
    e(f"v_add_u32 v{vQl}, s{sT}, v{vQoff}")
el(jit())
cm("remaining setup in the shadow of the loads")
e(f"s_mov_b32 s{rO+2}, {BUFSZ}")
e(f"s_mov_b32 s{rO+3}, 0x00020000")
e(f"s_mov_b32 s{sC}, {hex(CBITS)}")
e(f"s_mov_b32 s{sC+1}, {hex(CBITS)}")
def late_first():
    e(f"s_bitcmp1_b32 s{sW}, 1")
    e("s_cbranch_scc0 L_v0")
    e(f"s_mov_b32 m0, s{sDm}")
    e("s_nop 0")
    e(f"buffer_load_dwordx4 v{vDma}, s[{rD}:{rD+3}], 0 offen {DF} lds")
    L("L_v0")
    el(dma(1))
D1 = int(CFG.get("d1", 1)); D2 = int(CFG.get("d2", 2))
if D1 == -1: late_first()
if D2 == -1: el(dma(2) + dma(3))
cm("ones region: 512 threads x 16 B of (1,0,0,0) ; progress flags = 0")
e(f"v_mov_b32 v{vT+4}, 0x3f80")
e(f"v_mov_b32 v{vT+5}, 0")
e(f"v_mov_b32 v{vT+6}, 0x3f80")
e(f"v_mov_b32 v{vT+7}, 0")
e(f"v_lshlrev_b32 v{vT+1}, 4, v0")
e(f"v_add_u32 v{vT+1}, {ONES}, v{vT+1}")
e(f"ds_write_b128 v{vT+1}, v[{vT+4}:{vT+7}]")
e(f"v_lshlrev_b32 v{vFw}, 2, v0")
e(f"v_add_u32 v{vFw}, {FLAG}, v{vFw}")
e(f"ds_write_b32 v{vFw}, v{vT+5}")
e(f"v_and_b32 v{vT+2}, 3, v{vLane}")
e(f"v_lshlrev_b32 v{vT+2}, 8, v{vT+2}")
e(f"v_lshl_add_u32 v{vT+2}, v{vLane}, 2, v{vT+2}")
e(f"s_lshl_b32 s{sT}, s{sHalf}, 10")
e(f"s_add_u32 s{sT}, s{sT}, {FLAG}")
e(f"v_add_u32 v{vFr}, s{sT}, v{vT+2}")
e(f"v_xor_b32 v{vFp}, 1024, v{vFw}")
e(f"v_mov_b32 v{vProg}, 1")
def late_first():
    e(f"s_bitcmp1_b32 s{sW}, 1")
    e("s_cbranch_scc0 L_v0")
    e(f"s_mov_b32 m0, s{sDm}")
    e("s_nop 0")
    e(f"buffer_load_dwordx4 v{vDma}, s[{rD}:{rD+3}], 0 offen {DF} lds")
    L("L_v0")
    el(dma(1))
D1 = int(CFG.get("d1", 1)); D2 = int(CFG.get("d2", 2))
if D1 == 0: late_first()
if D2 == 0: el(dma(2) + dma(3))
cm("K read base")
e(f"s_mul_i32 s{sT}, s{sHalf}, {2*PIECE}")
e(f"v_add_u32 v{vK0}, s{sT}, v{vQoff}")
cm("V read base: half*14336 + 7168 + (8h+r)*56 + dchunk*8")
e(f"v_bfe_u32 v{vT+1}, v{vLane}, 2, 2")
e(f"v_lshl_add_u32 v{vT+1}, v{vH}, 3, v{vT+1}")
e(f"v_mul_u32_u24 v{vT+1}, 56, v{vT+1}")
e(f"v_and_b32 v{vT+2}, 1, v{vLane}")
e(f"v_lshlrev_b32 v{vT+2}, 2, v{vT+2}")
e(f"v_bfe_u32 v{vT+3}, v{vLane}, 4, 1")
e(f"v_lshl_add_u32 v{vT+2}, v{vT+3}, 1, v{vT+2}")
e(f"v_bfe_u32 v{vT+3}, v{vLane}, 1, 1")
e(f"v_add_u32 v{vT+2}, v{vT+2}, v{vT+3}")
e(f"v_lshl_add_u32 v{vSl0}, v{vT+2}, 3, v{vT+1}")
e(f"s_add_u32 s{sT}, s{sT}, {PIECE}")
e(f"v_add_u32 v{vV0}, s{sT}, v{vSl0}")
e(f"v_cmp_ne_u32 vcc, 7, v{vT+2}")
e(f"v_mul_u32_u24 v{vSl1}, 64, v{vH}")
e(f"v_sub_u32 v{vSl1}, {ONES+224}, v{vSl1}")
e(f"v_mov_b32 v{vK}, v{vK0}")
e(f"v_cndmask_b32 v{vV0}, v{vSl1}, v{vV0}, vcc")
e(f"v_cndmask_b32 v{vOne}, 0, 1, vcc")
e(f"v_mov_b32 v{vV}, v{vV0}")
e(f"v_mov_b32 v{vIdx}, 0xdddddddd")
if D1 == 1: late_first()
if D2 == 1: el(dma(2) + dma(3))
for r in range(OA, OA+32):
    e(f"v_mov_b32 v{r}, 0")
if D1 == 2: late_first()
cm("output staging address: partner region + ql*56 + 32h")
e(f"v_lshl_add_u32 v{vOw}, v{vH}, 3, v{vQoff}")
e(f"v_add_u32 v{vOw}, s{sXr}, v{vOw}")
cm("per-lane scale for the duplicated dims (zero for h=1)")
e(f"v_cmp_eq_u32 vcc, 0, v{vH}")
e(f"v_mov_b32 v{vT}, s{sC}")
e(f"s_mov_b32 s{sI}, 0")
e(f"v_cndmask_b32 v{vT}, 0, v{vT}, vcc")
e(f"s_mov_b32 s{sExp}, 0")
e(f"s_mov_b64 s[{sFast}:{sFast+1}], -1")
e(f"s_bitcmp1_b32 s{sW}, 0")
e(f"s_cselect_b32 s{sLim3}, 0, {ITERS-2}")
if D2 == 2: el(dma(2) + dma(3))
if IPF:
    cm("idle time: each wave pulls one stretch of the epilogue code into the instruction cache / L2")
    e("s_mov_b64 exec, 0")
    for k in range(7):
        e(f"s_cmp_eq_u32 s{sW}, {k}")
        e(f"s_cbranch_scc1 L_pad{k}")
    e("s_branch L_pad7")
    L("L_padret")
    e("s_mov_b64 exec, -1")
if D1 == 3:
    e(f"s_bitcmp1_b32 s{sW}, 1")
    e("s_cbranch_scc1 L_qv")
    e("s_waitcnt vmcnt(1)")
    e("s_branch L_qk")
    L("L_qv")
    e("s_waitcnt vmcnt(0)")
    L("L_qk")
elif D2 == 3:
    e(f"s_waitcnt vmcnt(2)")
else:
    e(f"s_waitcnt vmcnt({5 if PF else 4})")
stamp("q")
if not QD:
    for i in range(4): e(f"ds_read_b64 v[{QA+2*i}:{QA+2*i+1}], v{vQl} offset:{8*i}")
cm("Q prep: bf16 -> f32, * scale*log2(e), -> bf16 (temporaries: the S buffers)")
TT = SA[0]
for hf in range(2):
    if not QD: e(f"s_waitcnt lgkmcnt({2 - hf})")
    for i in range(4*hf, 4*hf+4):
        e(f"v_lshlrev_b32 v{TT+2*i}, 16, v{QA+i}")
        e(f"v_and_b32 v{TT+2*i+1}, 0xffff0000, v{QA+i}")
    for i in range(4*hf, 4*hf+4):
        if i < 2: e(f"v_pk_mul_f32 v[{TT+2*i}:{TT+2*i+1}], v[{TT+2*i}:{TT+2*i+1}], v[{vT}:{vT+1}] op_sel_hi:[1,0]")
        else: e(f"v_pk_mul_f32 v[{TT+2*i}:{TT+2*i+1}], v[{TT+2*i}:{TT+2*i+1}], s[{sC}:{sC+1}]")
    for i in range(4*hf, 4*hf+4):
        e(f"v_cvt_pk_bf16_f32 v{QA+i}, v{TT+2*i}, v{TT+2*i+1}")
    e(f"ds_write_b128 v{vX}, v[{QA+4*hf}:{QA+4*hf+3}] offset:{1024*hf}")
stamp("prep")
if D1 == 3: late_first()
if D2 == 3: el(dma(2) + dma(3))
el(jit())
cm("K loaders: first block landed")
e(f"s_bitcmp1_b32 s{sW}, 1")
e("s_cbranch_scc1 L_bar")
e(f"s_waitcnt vmcnt({4 if PF else 3})")
L("L_bar")
e("s_waitcnt lgkmcnt(0)")
stamp("prebar")
e(f"s_barrier")
stamp("bar")
el(jit())
cm("peeled M(0): QK only")
e("s_setprio 3")
el(kread(KF[0], 0))
e(f"ds_read_b128 v[{QB}:{QB+3}], v{vXr}")
e(f"ds_read_b128 v[{QB+4}:{QB+7}], v{vXr} offset:1024")
e(f"s_waitcnt lgkmcnt(2)")
q = qk(SA[0], KF[0], QA)
e(q[0]); e(q[1])
e(f"s_waitcnt lgkmcnt(0)")
q = qk(SB[0], KF[0], QB)
e(q[0])
e(f"s_cmp_eq_u32 s{sHalf}, 0")
e(q[1])
e("s_cbranch_scc0 L_firstY")
cm("waves 0-3: E(0), then the rest of stage 0 is published")
e("s_setprio 1")
e("s_nop 5")
stamp("e0")
el(ex(SA[0]) + ex(SB[0]))
e("s_setprio 3")
e("s_waitcnt vmcnt(0)")
e("s_barrier")
stamp("bar2")
el(kread(KF[1], 1) + vread(VF[0], 0))
el(jit())
cm("peeled M(1) of waves 0-3: carries their loads of stage 1")
el(setstage(1) + dma(0))
e("s_waitcnt lgkmcnt(0)")
M = qk(SA[1], KF[1], QA) + pv(OA, VF[0], SA[0]) + qk(SB[1], KF[1], QB) + pv(OB, VF[0], SB[0])
kr = kread(KF[0], 2); vr = vread(VF[1], 1)
emit_m(M, [[vr[0]] + dma(1), [vr[1]], [vr[2]] + dma(2), [vr[3]] + dma(3), [kr[0]] + setstage(2), [kr[1]] + dma(0), [kr[2]] + dma(1),
           [kr[3], f"s_mov_b32 s{sNxt}, {SLOT}", f"s_cmp_eq_u32 s{sI}, 1"]])
e("s_branch L_E1")
L("L_firstY")
el(jit())
el(NEXT5)
e("s_waitcnt vmcnt(5)")
e("s_barrier")
stamp("bar2")
el(kread(KF[1], 1) + vread(VF[0], 0))
e("s_branch L_E0")

def mseg(t):
    p = t & 1
    M = qk(SA[p], KF[p], QA) + pv(OA, VF[1-p], SA[1-p]) + qk(SB[p], KF[p], QB) + pv(OB, VF[1-p], SB[1-p])
    kr = kread(KF[1-p], (t + 1) & 3); vr = vread(VF[p], t)
    fill = [[] for _ in range(8)]
    cm(f"M({t})")
    el(jit())
    e("s_setprio 3")
    if t == 0:
        e(f"v_mad_u32_u24 v{vV}, s{sNxt}, v{vOne}, v{vV0}")
    e("s_waitcnt lgkmcnt(0)")
    for i in range(4): fill[i] += [vr[i]]
    if t == 3:
        fill[0] = ["s_waitcnt vmcnt(3)", f"s_cmp_lt_u32 s{sI}, {ITERS-2}", "s_cbranch_scc1 L_w2", "s_waitcnt vmcnt(0)", "L_w2:",
                   f"ds_add_u32 v{vFw}, v{vProg}"] + fill[0]
        fill[1] += [f"s_add_u32 s{sExp}, s{sExp}, 1", f"v_add_u32 v{vK}, s{sNxt}, v{vK0}"]
        fill[2] += dmal(t)
        fill[3] += [f"ds_read_b32 v{vFl}, v{vFr}"]
        fill[5] += ["s_waitcnt lgkmcnt(0)", f"v_cmp_gt_u32 vcc, s{sExp}, v{vFl}", f"s_cbranch_vccnz L_poll", f"L_pollok:", kr[0]]
        fill[6] += [kr[1], kr[2]]
        fill[7] += [kr[3]]
    else:
        for i in range(4): fill[4+i] += [kr[i]]
        fill[5] += dmal(t)
    if t == 0:
        fill[1] += [f"s_add_u32 s{sT}, s{sI}, 2", f"s_and_b32 s{sT}, s{sT}, 3", f"s_mul_i32 s{sT}, s{sT}, {SLOT}"]
        fill[2] += [f"s_add_u32 s{sDm}, s{sT}, s{sDmaL}", f"s_add_u32 s{sStg}, s{sStg}, {PIECE}"]
        if ITERS > 8:
            fill[3] += [f"s_cmp_eq_u32 s{sStg}, {8*PIECE}", f"s_cselect_b32 s{sStg}, 0, s{sStg}"]
    if t == 1:
        fill[6] += [f"s_add_u32 s{sT}, s{sI}, 1", f"s_and_b32 s{sT}, s{sT}, 3", f"s_mul_i32 s{sNxt}, s{sT}, {SLOT}"]
        fill[7] += [f"s_cmp_eq_u32 s{sI}, {ITERS-1}"]
    if t == 3:
        fill[6] += [f"s_add_u32 s{sI}, s{sI}, 1"]
    emit_m(M, fill)
def eseg(E, name):
    cm(name)
    el(jit())
    e("s_setprio 0")
    el(E[:E1])
    e("s_setprio 1")
    el(E[E1:])

out.append(".p2align 6")
L("L_loop")
mseg(0)
L("L_E0")
eseg(ex(SA[0]) + ex(SB[0]), "E(0)")
mseg(1)
L("L_E1")
eseg(ex(SA[1]) + ex(SB[1]), "E(1)")
e("s_cbranch_scc1 L_tail")
mseg(2)
eseg(ex(SA[0]) + ex(SB[0]), "E(2)")
mseg(3)
eseg(ex(SA[1]) + ex(SB[1]), "E(3)")
e("s_branch L_loop")
L(f"L_poll")
e(f"ds_read_b32 v{vFl}, v{vFr}")
e("s_waitcnt lgkmcnt(0)")
e(f"v_cmp_gt_u32 vcc, s{sExp}, v{vFl}")
e(f"s_cbranch_vccnz L_poll")
e(f"s_branch L_pollok")

L("L_tail")
cm("last two key tiles (30, 31): q tile A first, so that its partial sums can be handed over early")
e("s_setprio 3")
stamp("tail")
e("s_waitcnt lgkmcnt(0)")
kr = kread(KF[1], 3); v30 = vread(VF[0], 2); v31 = vread(VF[1], 3)
M = qk(SA[0], KF[0], QA) + pv(OA, VF[1], SA[1]) + pv(OB, VF[1], SB[1]) + qk(SA[1], KF[1], QA)
emit_m(M, [pad() + kr[0:2], kr[2:4], v30[0:2], v30[2:4], [], ["s_waitcnt lgkmcnt(4)"] + v31[0:2], v31[2:4], []])
stamp("t2")
eseg(ex(SA[0]) + ex(SA[1]), "E'(30)")
e("s_setprio 3")
stamp("t3")
e("s_waitcnt lgkmcnt(0)")
el(jit())
xw = [f"ds_write_b128 v{vX}, v[{OA+4*i}:{OA+4*i+3}] offset:{1024*i}" for i in range(4)]
M = pv(OA, VF[0], SA[0]) + pv(OA, VF[1], SA[1]) + qk(SB[0], KF[0], QB) + qk(SB[1], KF[1], QB)
WM = CFG.get("wm", "a")
addf = [f"ds_add_u32 v{vFw}, v{vProg}"]
if WM == "a":
    emit_m(M, [[], [], [], [], ["s_nop 7", "s_nop 1"], xw[0:1], xw[1:3], xw[3:4] + addf + [f"s_add_u32 s{sExp}, s{sExp}, 1"]])
    xw2 = []
elif WM == "b":
    emit_m(M, [[], [], [], [], ["s_nop 7", "s_nop 1"], xw[0:2], xw[2:4] + addf, [f"s_add_u32 s{sExp}, s{sExp}, 1", "s_nop 1"]])
    xw2 = []
elif WM == "c":
    emit_m(M, [[], [], [], [], ["s_nop 7", "s_nop 1"], xw[0:1], xw[1:2], xw[2:3] + [f"s_add_u32 s{sExp}, s{sExp}, 1", "s_nop 1"]])
    xw2 = xw[3:4] + addf
R = SA[0]; P0 = SA[1]
def xreads():
    e(f"ds_read_b32 v{vFl}, v{vFp}")
    for i in (3, 0, 1, 2):
        e(f"ds_read_b128 v[{R+4*i}:{R+4*i+3}], v{vXr} offset:{1024*i}")
E = ex(SB[0]) + ex(SB[1])
PB = pv(OB, VF[0], SB[0]) + pv(OB, VF[1], SB[1])
stamp("t4")
e(f"s_mov_b32 s{sT+1}, 0x71800000")
e(f"s_mov_b32 s{sSo}, 0x207")
e(f"s_cmp_eq_u32 s{sHalf}, 0")
e("s_cbranch_scc0 L_lastY")
eseg(E, "E'(31), waves 0-3")
stamp("t0")
e("s_setprio 3")
e(PB[0]); el(xw2); e(PB[1]); e(PB[2]); e(PB[3])
e("s_branch L_xch_spin")
L("L_lastY")
el(jit())
cm("E'(31), waves 4-7")
if CFG["xr"] == "0": xreads()
el(pad())
e("s_setprio 0")
for i, s in enumerate(E):
    if i == E1: e(f"s_setprio {CFG['pe']}")
    if i == 10:
        e(PB[0]); el(xw2)
    if i == 18:
        e(PB[1])
        if 0 < int(CFG["xr"]) < 32: xreads()
    if i == 27: e(PB[2])
    e(s)
stamp("t0")
e("s_nop 0")
el(pad("s_nop 0"))
e(PB[3])
e(f"s_setprio {CFG['py']}")
if int(CFG["xr"]) >= 32: xreads()
e("s_waitcnt lgkmcnt(4)")
e(f"v_cmp_gt_u32 vcc, s{sExp}, v{vFl}")
e("s_cbranch_vccnz L_xch_spin")
e("s_nop 7")
L("L_xch_ok")
el(jit())
stamp("xok")
e(f"s_waitcnt lgkmcnt(3)")
def padd(r): e(f"v_pk_add_f32 v[{OB+r}:{OB+r+1}], v[{OB+r}:{OB+r+1}], v[{R+r}:{R+r+1}]")
padd(12)
padd(14)
cm("1/l (valid in lanes 32..63) -> all lanes")
e(f"v_rcp_f32 v{vT}, v{OB+12}")
e(f"s_waitcnt lgkmcnt(2)")
padd(0)
e(f"v_mov_b32 v{vT+4}, v{vT}")
padd(2)
e(f"s_waitcnt lgkmcnt(1)")
el(pad())
padd(4)
e(f"v_permlane32_swap_b32 v{vT}, v{vT+4}")
padd(6)
e(f"s_waitcnt lgkmcnt(0)")
padd(8)
padd(10)
cm("safety check of the unshifted exponentials, part 1: l in [1, 2^100]")
e(f"v_cmp_nle_f32 vcc, 1.0, v{OB+12}")
e(f"v_cmp_nge_f32 s[{sT+2}:{sT+3}], s{sT+1}, v{OB+12}")
L("L_fin")
stamp("fin")
def pmul(r): e(f"v_pk_mul_f32 v[{OB+r}:{OB+r+1}], v[{OB+r}:{OB+r+1}], v[{vT+4}:{vT+5}] op_sel_hi:[1,0]")
if CFG.get("w128"):
    for r in range(8, 16, 2): pmul(r)
    for r in range(8, 16, 2): e(f"v_cvt_pk_bf16_f32 v{P0+r//2}, v{OB+r}, v{OB+r+1}")
    cm("upper lanes spill 8 junk bytes into the next row; the second write (in order) covers them")
    e(f"ds_write_b128 v{vOw}, v[{P0+4}:{P0+7}] offset:16")
    for r in range(0, 8, 2): pmul(r)
    for r in range(0, 8, 2): e(f"v_cvt_pk_bf16_f32 v{P0+r//2}, v{OB+r}, v{OB+r+1}")
    e(f"ds_write_b128 v{vOw}, v[{P0}:{P0+3}]")
else:
    for r in range(0, 8, 2): pmul(r)
    for r in range(0, 8, 2): e(f"v_cvt_pk_bf16_f32 v{P0+r//2}, v{OB+r}, v{OB+r+1}")
    e(f"ds_write_b64 v{vOw}, v[{P0}:{P0+1}]")
    e(f"ds_write_b64 v{vOw}, v[{P0+2}:{P0+3}] offset:8")
    el(pad())
    for r in range(8, 16, 2): pmul(r)
    for r in range(8, 16, 2): e(f"v_cvt_pk_bf16_f32 v{P0+r//2}, v{OB+r}, v{OB+r+1}")
    e(f"ds_write_b64 v{vOw}, v[{P0+4}:{P0+5}] offset:16")
    e("s_mov_b32 exec_hi, 0")
    e(f"ds_write_b64 v{vOw}, v[{P0+6}:{P0+7}] offset:24")
    e("s_mov_b32 exec_hi, -1")
e(f"ds_read_b128 v[{P0+8}:{P0+11}], v{vXr}")
e(f"ds_read_b128 v[{P0+12}:{P0+15}], v{vXr} offset:1024")
stamp("stg")
e("s_setprio 0")
el(pad())
cm("part 2: every output finite")
e(f"s_or_b64 vcc, vcc, s[{sT+2}:{sT+3}]")
e(f"v_pk_add_f32 v[{vT+2}:{vT+3}], v[{OB}:{OB+1}], v[{OB+2}:{OB+3}]")
e(f"v_pk_add_f32 v[{vT+6}:{vT+7}], v[{OB+4}:{OB+5}], v[{OB+6}:{OB+7}]")
e(f"v_pk_add_f32 v[{R}:{R+1}], v[{OB+8}:{OB+9}], v[{OB+10}:{OB+11}]")
e(f"v_pk_add_f32 v[{R+2}:{R+3}], v[{OB+12}:{OB+13}], v[{OB+14}:{OB+15}]")
e(f"v_pk_add_f32 v[{vT+2}:{vT+3}], v[{vT+2}:{vT+3}], v[{vT+6}:{vT+7}]")
e(f"v_pk_add_f32 v[{R}:{R+1}], v[{R}:{R+1}], v[{R+2}:{R+3}]")
e(f"s_mov_b32 vcc_lo, 0")
e(f"v_pk_add_f32 v[{vT+2}:{vT+3}], v[{vT+2}:{vT+3}], v[{R}:{R+1}]")
e(f"s_and_b64 vcc, vcc, s[{sFast}:{sFast+1}]")
e(f"v_add_f32 v{vT+2}, v{vT+2}, v{vT+3}")
e(f"v_cmp_class_f32 s[{sT+4}:{sT+5}], v{vT+2}, s{sSo}")
el(pad("s_nop 0"))
e(f"s_and_b64 s[{sT+4}:{sT+5}], s[{sT+4}:{sT+5}], s[{sFast}:{sFast+1}]")
e(f"s_or_b64 vcc, vcc, s[{sT+4}:{sT+5}]")
e("s_cbranch_vccnz L_slow")
e("s_waitcnt lgkmcnt(1)")
e(f"buffer_store_dwordx4 v[{P0+8}:{P0+11}], v{vOl}, s[{rO}:{rO+3}], s{sQrow} offen {ST}")
e("s_mov_b32 exec_hi, 0xffff")
e("s_waitcnt lgkmcnt(0)")
e(f"buffer_store_dwordx4 v[{P0+12}:{P0+15}], v{vOl}, s[{rO}:{rO+3}], s{sQrow} offen offset:1024 {ST}")
if CFG.get("reveal"):
    e("s_memtime s[92:93]")
    e("s_waitcnt lgkmcnt(0)")
    e(f"s_and_b32 s94, s2, {int(CFG.get('rmask', 255))}")
    e(f"s_cmp_eq_u32 s94, {int(CFG.get('rwg', 133))}")
    e("s_cbranch_scc0 L_end")
    if CFG["reveal"] == "end":
        e(f"s_sub_u32 s94, s92, s{sStamp}")
        e(f"s_sub_u32 s94, s94, {int(CFG.get('roff', 24000))}")
        e(f"s_max_i32 s94, s94, 0")
    else:
        e(f"s_sub_u32 s94, s{sStamp+2}, s{sStamp}")
    e("s_lshl_b32 s94, s94, 4")
    L("L_rev")
    e("s_memtime s[96:97]")
    e("s_waitcnt lgkmcnt(0)")
    e("s_sub_u32 s96, s96, s92")
    e("s_cmp_lt_u32 s96, s94")
    e("s_cbranch_scc1 L_rev")
    e("s_branch L_end")
if CFG["stamp"]:
    stamp("st")
    e("s_waitcnt vmcnt(0)")
    stamp("end")
    e("s_memrealtime s[74:75]")
    e("s_load_dwordx2 s[76:77], s[0:1], 40")
    e("s_waitcnt lgkmcnt(0)")
    e("s_mov_b32 s78, 0x100000")
    e("s_mov_b32 s79, 0x00020000")
    e("s_mov_b64 exec, 1")
    e(f"s_lshl_b32 s82, s2, 3")
    e(f"s_add_u32 s82, s82, s{sW}")
    e(f"s_mul_i32 s82, s82, 48")
    e("v_mov_b32 v3, s82")
    for k in range(8):
        e(f"v_mov_b32 v{4+k}, s{sStamp+2*k}")
    e("v_mov_b32 v12, s72")
    e("v_mov_b32 v13, s74")
    e("s_getreg_b32 s80, hwreg(HW_REG_XCC_ID)")
    e("v_mov_b32 v14, s80")
    e("buffer_store_dwordx4 v[4:7], v3, s[76:79], 0 offen")
    e("buffer_store_dwordx4 v[8:11], v3, s[76:79], 0 offen offset:16")
    e("buffer_store_dwordx4 v[12:15], v3, s[76:79], 0 offen offset:32")
L("L_end")
e("s_endpgm")
cm("wait for the partner's partial sums")
L("L_xch_spin")
e(f"ds_read_b32 v{vFl}, v{vFp}")
e("s_waitcnt lgkmcnt(0)")
e(f"v_cmp_gt_u32 vcc, s{sExp}, v{vFl}")
e("s_cbranch_vccnz L_xch_spin")
xreads()
e(f"s_setprio {CFG['px']}")
e("s_nop 0")
el(pad("s_nop 0"))
e("s_branch L_xch_ok")

cm("fallback: exact online-max softmax for this wave's 32 queries (tile B), all 2048 keys")
L("L_slow")
e("s_waitcnt lgkmcnt(0)")
e(f"s_mov_b64 s[{sFast}:{sFast+1}], 0")
QR = QA; S = SA[0]; vM = vT; vMn = vT + 1; vAl = vT + 2; vKo = vT + 4; vVo = vT + 5; vVa = vT + 6
e(f"s_mov_b32 s{rK+2}, {BUFSZ}")
e(f"s_mov_b32 s{rK+3}, 0x00020000")
e(f"s_mov_b32 s{rV+2}, {BUFSZ}")
e(f"s_mov_b32 s{rV+3}, 0x00020000")
e(f"buffer_load_dwordx4 v[{QR}:{QR+3}], v{vQoff}, s[{rQ}:{rQ+3}], s{sQrow} offen")
e(f"buffer_load_dwordx4 v[{QR+4}:{QR+7}], v{vQoff}, s[{rQ}:{rQ+3}], s{sQrow} offen offset:16")
e(f"v_add_u32 v{vKo}, s{sHead}, v{vQoff}")
e(f"v_add_u32 v{vVo}, s{sHead}, v{vOl}")
e(f"v_add_u32 v{vVa}, s{sXr}, v{vSl0}")
e(f"v_cmp_eq_u32 vcc, 1, v{vOne}")
e(f"s_mov_b32 m0, s{sXr}")
e(f"v_mov_b32 v{vM}, 0xff7fffff")
e(f"v_cndmask_b32 v{vVa}, v{vSl1}, v{vVa}, vcc")
for r in range(16): e(f"v_mov_b32 v{OB+r}, 0")
e(f"v_cmp_eq_u32 vcc, 0, v{vH}")
e(f"s_mov_b32 s{sStg}, 0")
e("s_waitcnt vmcnt(0)")
e(f"v_cndmask_b32 v{QR}, 0, v{QR}, vcc")
e(f"v_cndmask_b32 v{QR+1}, 0, v{QR+1}, vcc")
L("L_slow_loop")
for i in range(4):
    e(f"buffer_load_dwordx2 v[{KF[0]+2*i}:{KF[0]+2*i+1}], v{vKo}, s[{rK}:{rK+3}], s{sStg} offen offset:{8*i}")
e(f"buffer_load_dwordx4 v{vVo}, s[{rV}:{rV+3}], s{sStg} offen lds")
e(f"buffer_load_dwordx4 v{vVo}, s[{rV}:{rV+3}], s{sStg} offen offset:1024 lds")
e("s_waitcnt vmcnt(0)")
el(vread(VF[0], 0, vVa))
q = qk(S, KF[0], QR)
e(q[0]); e(q[1])
e("s_nop 15")
e(f"v_max3_f32 v{vMn}, v{S}, v{S+1}, v{vM}")
for r in range(2, 16, 2):
    e(f"v_max3_f32 v{vMn}, v{S+r}, v{S+r+1}, v{vMn}")
e(f"v_mov_b32 v{vAl}, v{vMn}")
e("s_nop 1")
e(f"v_permlane32_swap_b32 v{vMn}, v{vAl}")
e("s_nop 1")
e(f"v_max_f32 v{vMn}, v{vMn}, v{vAl}")
e(f"v_sub_f32 v{vAl}, v{vM}, v{vMn}")
e(f"v_mul_f32 v{vAl}, s{sC}, v{vAl}")
e(f"v_exp_f32 v{vAl}, v{vAl}")
e(f"v_mov_b32 v{vM}, v{vMn}")
for r in range(16):
    e(f"v_sub_f32 v{S+r}, v{S+r}, v{vM}")
    e(f"v_mul_f32 v{S+r}, s{sC}, v{S+r}")
    e(f"v_exp_f32 v{S+r}, v{S+r}")
for r in range(16):
    e(f"v_mul_f32 v{OB+r}, v{vAl}, v{OB+r}")
e("s_waitcnt lgkmcnt(0)")
e("s_nop 1")
P = pv(OB, VF[0], S)
e(P[0]); e(P[1])
e("s_nop 15")
e(f"s_add_u32 s{sStg}, s{sStg}, 1792")
e(f"s_cmp_lt_u32 s{sStg}, {HEADB}")
e("s_cbranch_scc1 L_slow_loop")
e(f"v_rcp_f32 v{vT}, v{OB+12}")
e("s_nop 0")
e(f"v_mov_b32 v{vT+4}, v{vT}")
e("s_nop 1")
e(f"v_permlane32_swap_b32 v{vT}, v{vT+4}")
e("s_nop 1")
e("s_branch L_fin")

out.append('.section .rodata,"a"')
out.append(".p2align 6")
out.append(f".amdhsa_kernel {NAME}_kernel")
out.append(f"  .amdhsa_next_free_vgpr {NVGPR}")
out.append("  .amdhsa_next_free_sgpr 102")
out.append(f"  .amdhsa_accum_offset {NVGPR}")
out.append("  .amdhsa_group_segment_fixed_size 0")
out.append("  .amdhsa_kernarg_size 48")
out.append("  .amdhsa_user_sgpr_count 2")
out.append("  .amdhsa_user_sgpr_kernarg_segment_ptr 1")
out.append("  .amdhsa_system_sgpr_workgroup_id_x 1")
out.append(".end_amdhsa_kernel")
open(sys.argv[1], "w").write("\n".join(out) + "\n")
```

```python
import sys, struct, math
NAME = "standalone__fused_io_aware_attn__prompt"
HEADER = open("cdna_kernels/%s.s.ref" % NAME).read().split("; Override launch")[0]

CFG = dict(stamp=False, e1=7, st="sc1", df="nt", qf="nt", xr="0", d1=0, d2=1, px=3, py=1, pe=2, qdirect=True, cpf=3)
for a in sys.argv[2:]:
    k, v = a.split("=")
    CFG[k] = {"True": True, "False": False, "None": None}.get(v, v)
ITERS = int(CFG.get("iters", 8))
E1 = int(CFG["e1"])
DF = CFG["df"].replace("+", " "); QF = CFG["qf"].replace("+", " "); ST = CFG["st"].replace("+", " ")

BUFSZ = 3670016
HEADB = 114688
PIECE = 7168
SLOT = 4 * PIECE
NSLOT = 4
ONES = NSLOT * SLOT
XCH = ONES + 8192
FLAG = XCH + 8 * 4096
LDS = FLAG + 2048
c = (28 ** -0.5) * math.log2(math.e)
CBITS = struct.unpack("<I", struct.pack("<f", c))[0]

vFp = 1; vOw = 2; vOl = 3
SA = [4, 20]; SB = [36, 52]; OA = 68; OB = 84
QA = 100; QB = 108
KF = [116, 124]; VF = [132, 140]
vK = 148; vV = 149; vK0 = 150; vV0 = 151; vOne = 152; vIdx = 153; vDma = 154
vLane = 155; vH = 156; vQoff = 157; vX = 158; vQl = 159; vXr = 160; vFw = 161; vFr = 162; vProg = 163; vFl = 164
vSl0 = 165; vSl1 = 166
vT = 168
NVGPR = 176
sQ = 4; sKp = 6; sVp = 8; sO = 10
rQ = 12; rD = 16; rO = 20; rK = 24; rV = 28
sW = 32; sHalf = 33; sHead = 34; sI = 35; sLim3 = 36; sNxt = 37; sDm = 38; sDmaL = 39; sStg = 40; sOff3 = 41
sC = 42
sT = 44
sXr = 50; sSo = 51; sQrow = 52; sQA = 53; sExp = 88; sFast = 90; sPf = 89; rP = 24; vPf = 167
sStamp = 56

out = []
def e(s): out.append(s if s.endswith(":") else "    " + s)
def el(l):
    for s in l: e(s)
def L(s): out.append(s + ":")
def cm(s): out.append("    ; " + s)

def qk(S, Kf, Q):
    return [f"v_mfma_f32_32x32x16_bf16 v[{S}:{S+15}], v[{Kf}:{Kf+3}], v[{Q}:{Q+3}], 0",
            f"v_mfma_f32_32x32x16_bf16 v[{S}:{S+15}], v[{Kf+4}:{Kf+7}], v[{Q+4}:{Q+7}], v[{S}:{S+15}]"]
def pv(O, Vf, S):
    return [f"v_smfmac_f32_32x32x32_bf16 v[{O}:{O+15}], v[{Vf}:{Vf+3}], v[{S}:{S+7}], v{vIdx}",
            f"v_smfmac_f32_32x32x32_bf16 v[{O}:{O+15}], v[{Vf+4}:{Vf+7}], v[{S+8}:{S+15}], v{vIdx}"]
def ex(S): return [f"v_exp_f32 v{S+i}, v{S+i}" for i in range(16)]
def kread(dst, tile, addr=vK): return [f"ds_read_b64 v[{dst+2*i}:{dst+2*i+1}], v{addr} offset:{tile*1792+8*i}" for i in range(4)]
def vread(dst, tile, addr=vV):
    return [f"ds_read_b64_tr_b16 v[{dst+2*i}:{dst+2*i+1}], v{addr} offset:{tile*1792+(i>>1)*896+(i&1)*224}" for i in range(4)]
def dma(t):
    off = ["0", "2048", "4096", f"s{sOff3}"][t]
    return [f"s_add_u32 m0, s{sDm}, {off}", f"s_add_u32 s{sSo}, s{sStg}, {off}",
            f"buffer_load_dwordx4 v{vDma}, s[{rD}:{rD+3}], s{sSo} offen {DF} lds"]
def dmal(t):
    lim = f"s{sLim3}" if t == 3 else str(ITERS - 2)
    return [f"s_cmp_lt_u32 s{sI}, {lim}", f"s_cbranch_scc0 L_nodma{t}"] + dma(t) + [f"L_nodma{t}:"]
def setstage(st): return [f"s_add_u32 s{sDm}, s{sDmaL}, {st*SLOT}", f"s_mov_b32 s{sStg}, {st*PIECE}"]
NEXT5 = setstage(1) + dma(0) + dma(1) + dma(2) + dma(3) + setstage(2) + dma(0)
def emit_m(M, fill):
    for g in range(len(M)):
        e(M[g]); el(fill[g])
nj = [0]
def jit():
    if not CFG.get("jit"): return []
    k = nj[0]; nj[0] += 1
    return ["s_cselect_b32 s99, 1, 0", "s_memtime s[96:97]", "s_waitcnt lgkmcnt(0)", f"s_mul_i32 s96, s96, {2654435761 & 0x7fffffff}", f"s_add_u32 s96, s96, s{sW}",
            "s_mul_i32 s96, s96, 40503", "s_lshr_b32 s96, s96, 26", "s_mul_i32 s97, s96, s96", "s_lshr_b32 s96, s97, 6", f"L_jit{k}:", "s_sleep 1", "s_sub_u32 s96, s96, 1",
            "s_cmp_gt_i32 s96, 0", f"s_cbranch_scc1 L_jit{k}", "s_cmp_eq_u32 s99, 1"]
IPF = int(CFG.get("ipf", 0))
npad = [0]
def pad(alt=None):
    if IPF and npad[0] < 8:
        k = npad[0]; npad[0] += 1
        return [f"L_pad{k}:", "s_cbranch_execz L_padret"]
    return [alt] if alt else []
nstamp = [0]
STS = CFG.get("sts", "start,q,bar,bar2,tail,t0,st,end").split(",")
def stamp(name):
    if CFG["stamp"] and name in STS:
        k = STS.index(name)
        e(f"s_memtime s[{sStamp+2*k}:{sStamp+2*k+1}]")

out.append(HEADER.rstrip())
out.append(f"; @launch grid=(256,1,1) block=(512,1,1) lds={LDS}")
out.append('.amdgcn_target "amdgcn-amd-amdhsa--gfx950"')
out.append(".text")
out.append(f".globl {NAME}_kernel")
out.append(".p2align 8")
out.append(f".type {NAME}_kernel,@function")
L(f"{NAME}_kernel")
stamp("start")
e(f"s_load_dwordx2 s[{rQ}:{rQ+1}], s[0:1], 0")
e(f"s_load_dwordx2 s[{rK}:{rK+1}], s[0:1], 8")
e(f"s_load_dwordx2 s[{rV}:{rV+1}], s[0:1], 16")
e(f"s_load_dwordx2 s[{rO}:{rO+1}], s[0:1], 24")
e("s_cmp_ge_u32 s2, 256")
e("s_cbranch_scc1 L_end")
if CFG["stamp"]:
    e(f"s_memrealtime s[72:73]")
CPF = int(CFG.get("cpf", 0))
if CPF:
    cm("one wave touches the kernel's own code lines (128 B apart) so that later instruction fetches hit in L2")
    e(f"v_subrev_u32 v{vT+2}, {CPF*64}, v0")
    e(f"s_getpc_b64 s[{sT}:{sT+1}]")
    L("L_pc")
    e(f"v_cmp_gt_u32 vcc, {int(CFG.get('ncpf', 38))}, v{vT+2}")
    e(f"s_and_saveexec_b64 s[{sT+2}:{sT+3}], vcc")
    e("s_cbranch_execz L_nocpf")
    e(f"v_lshlrev_b32 v{vT+2}, 7, v{vT+2}")
    e(f"v_mov_b32 v{vT+3}, s{sT+1}")
    e(f"v_add_co_u32 v{vT+2}, vcc, s{sT}, v{vT+2}")
    e("s_nop 1")
    e(f"v_addc_co_u32 v{vT+3}, vcc, 0, v{vT+3}, vcc")
    e(f"global_load_dword v167, v[{vT+2}:{vT+3}], off {CFG.get('cf','')}")
    L("L_nocpf")
    e(f"s_mov_b64 exec, s[{sT+2}:{sT+3}]")
cm("head = (b&7)*4 + (b>>6) ; q block = (b>>3)&7 ; wave w owns q tile A = w and B = w^4 of the block")
e(f"v_lshrrev_b32 v{vT}, 1, v0")
e(f"s_and_b32 s{sT}, s2, 7")
e(f"v_bfi_b32 v{vT}, 31, v0, v{vT}")
e(f"s_mul_i32 s{sT}, s{sT}, {4*HEADB}")
e(f"v_bfe_u32 v{vH}, v0, 5, 1")
e(f"s_and_b32 s{sT+1}, s2, 0xf8")
e(f"v_mul_u32_u24 v{vT}, 56, v{vT}")
e(f"s_mul_i32 s{sT+1}, s{sT+1}, 1792")
e(f"v_mad_u32_u24 v{vQl}, v{vH}, 24, v{vT}")
e(f"s_add_u32 s{sQA}, s{sT}, s{sT+1}")
e(f"v_lshrrev_b32 v1, 6, v0")
e(f"s_mov_b32 s{rQ+2}, {BUFSZ}")
e(f"s_mov_b32 s{rQ+3}, 0x00020000")
e(f"v_readfirstlane_b32 s{sW}, v1")
e(f"v_and_b32 v{vLane}, 63, v0")
e(f"s_lshr_b32 s{sT+1}, s2, 6")
e(f"s_mul_i32 s{sT+1}, s{sT+1}, {HEADB}")
e(f"s_add_u32 s{sHead}, s{sT}, s{sT+1}")
e(f"v_lshlrev_b32 v{vOl}, 4, v{vLane}")
cm("DMA lane offset: head + half*57344 + (w&1)*1024 + lane*16 ; LDS piece offset (w>>1)*7168 + (w&1)*1024")
e(f"s_lshr_b32 s{sHalf}, s{sW}, 2")
e(f"s_and_b32 s{sT+4}, s{sW}, 1")
e(f"s_mul_i32 s{sT+3}, s{sHalf}, 57344")
e(f"s_lshl_b32 s{sT+4}, s{sT+4}, 10")
e(f"s_add_u32 s{sT+3}, s{sT+3}, s{sHead}")
e(f"s_lshr_b32 s{sT+5}, s{sW}, 1")
e(f"s_add_u32 s{sT+3}, s{sT+3}, s{sT+4}")
e(f"s_mul_i32 s{sDmaL}, s{sT+5}, {PIECE}")
e(f"v_add_u32 v{vDma}, s{sT+3}, v{vOl}")
e(f"s_add_u32 s{sDmaL}, s{sDmaL}, s{sT+4}")
e(f"s_mov_b32 s{rD+2}, {BUFSZ}")
e(f"s_mov_b32 s{rD+3}, 0x00020000")
QD = CFG.get("qdirect"); PF = 0
if QD:
    e(f"s_mov_b32 m0, s{sDmaL}")
else:
    e(f"s_lshl_b32 s{sT}, s{sW}, 12")
    e(f"s_add_u32 m0, s{sT}, {XCH+2048}")
    e(f"s_mul_i32 s{sT}, s{sW}, 1792")
    e(f"s_add_u32 s{sT+2}, s{sT}, s{sQA}")
e(f"s_bitcmp1_b32 s{sW}, 1")
e(f"s_waitcnt lgkmcnt(0)")
stamp("karg")
if QD:
    e(f"buffer_load_dwordx4 v[{QA}:{QA+3}], v{vQl}, s[{rQ}:{rQ+3}], s{sQA} offen {QF}")
    e(f"buffer_load_dwordx4 v[{QA+4}:{QA+7}], v{vQl}, s[{rQ}:{rQ+3}], s{sQA} offen offset:16 {QF}")
else:
    e(f"buffer_load_dwordx4 v{vOl}, s[{rQ}:{rQ+3}], s{sT+2} offen {QF} lds")
    e("s_mov_b32 exec_hi, 0xffff")
    e(f"buffer_load_dwordx4 v{vOl}, s[{rQ}:{rQ+3}], s{sT+2} offen offset:1024 {QF} lds")
    e("s_mov_b32 exec_hi, -1")
    e(f"s_mov_b32 m0, s{sDmaL}")
e(f"s_cselect_b32 s{rD}, s{rV}, s{rK}")
e(f"s_cselect_b32 s{rD+1}, s{rV+1}, s{rK+1}")
cm("K loaders fetch their first block right away, V loaders a little later")
e("s_cbranch_scc1 L_k0")
e(f"buffer_load_dwordx4 v{vDma}, s[{rD}:{rD+3}], 0 offen {DF} lds")
L("L_k0")
e(f"s_sub_u32 s{sOff3}, 6144, s{sT+4}")
e(f"s_mov_b32 s{sDm}, s{sDmaL}")
e(f"s_mov_b32 s{sStg}, 0")
cm("exchange region: mine s(sT), partner's sXr ; tile B rows")
e(f"s_lshl_b32 s{sT}, s{sW}, 12")
e(f"s_add_u32 s{sT}, s{sT}, {XCH}")
e(f"s_xor_b32 s{sT+1}, s{sW}, 4")
e(f"s_mul_i32 s{sT+2}, s{sT+1}, 1792")
e(f"s_add_u32 s{sQrow}, s{sQA}, s{sT+2}")
e(f"s_lshl_b32 s{sT+1}, s{sT+1}, 12")
e(f"s_add_u32 s{sXr}, s{sT+1}, {XCH}")
e(f"v_add_u32 v{vX}, s{sT}, v{vOl}")
e(f"v_add_u32 v{vXr}, s{sXr}, v{vOl}")
cm("vQoff = rho*56 + 24h")
e(f"s_mul_i32 s{sT}, s{sW}, 1792")
e(f"v_subrev_u32 v{vQoff}, s{sT}, v{vQl}")
if not QD:
    e(f"s_lshl_b32 s{sT}, s{sW}, 12")
    e(f"s_add_u32 s{sT}, s{sT}, {XCH+2048}")
    e(f"v_add_u32 v{vQl}, s{sT}, v{vQoff}")
el(jit())
cm("remaining setup in the shadow of the loads")
e(f"s_mov_b32 s{rO+2}, {BUFSZ}")
e(f"s_mov_b32 s{rO+3}, 0x00020000")
e(f"s_mov_b32 s{sC}, {hex(CBITS)}")
e(f"s_mov_b32 s{sC+1}, {hex(CBITS)}")
def late_first():
    e(f"s_bitcmp1_b32 s{sW}, 1")
    e("s_cbranch_scc0 L_v0")
    e(f"s_mov_b32 m0, s{sDm}")
    e("s_nop 0")
    e(f"buffer_load_dwordx4 v{vDma}, s[{rD}:{rD+3}], 0 offen {DF} lds")
    L("L_v0")
    el(dma(1))
D1 = int(CFG.get("d1", 1)); D2 = int(CFG.get("d2", 2))
if D1 == -1: late_first()
if D2 == -1: el(dma(2) + dma(3))
cm("ones region: 512 threads x 16 B of (1,0,0,0) ; progress flags = 0")
e(f"v_mov_b32 v{vT+4}, 0x3f80")
e(f"v_mov_b32 v{vT+5}, 0")
e(f"v_mov_b32 v{vT+6}, 0x3f80")
e(f"v_mov_b32 v{vT+7}, 0")
e(f"v_lshlrev_b32 v{vT+1}, 4, v0")
e(f"v_add_u32 v{vT+1}, {ONES}, v{vT+1}")
e(f"ds_write_b128 v{vT+1}, v[{vT+4}:{vT+7}]")
e(f"v_lshlrev_b32 v{vFw}, 2, v0")
e(f"v_add_u32 v{vFw}, {FLAG}, v{vFw}")
e(f"ds_write_b32 v{vFw}, v{vT+5}")
e(f"v_and_b32 v{vT+2}, 3, v{vLane}")
e(f"v_lshlrev_b32 v{vT+2}, 8, v{vT+2}")
e(f"v_lshl_add_u32 v{vT+2}, v{vLane}, 2, v{vT+2}")
e(f"s_lshl_b32 s{sT}, s{sHalf}, 10")
e(f"s_add_u32 s{sT}, s{sT}, {FLAG}")
e(f"v_add_u32 v{vFr}, s{sT}, v{vT+2}")
e(f"v_xor_b32 v{vFp}, 1024, v{vFw}")
e(f"v_mov_b32 v{vProg}, 1")
def late_first():
    e(f"s_bitcmp1_b32 s{sW}, 1")
    e("s_cbranch_scc0 L_v0")
    e(f"s_mov_b32 m0, s{sDm}")
    e("s_nop 0")
    e(f"buffer_load_dwordx4 v{vDma}, s[{rD}:{rD+3}], 0 offen {DF} lds")
    L("L_v0")
    el(dma(1))
D1 = int(CFG.get("d1", 1)); D2 = int(CFG.get("d2", 2))
if D1 == 0: late_first()
if D2 == 0: el(dma(2) + dma(3))
cm("K read base")
e(f"s_mul_i32 s{sT}, s{sHalf}, {2*PIECE}")
e(f"v_add_u32 v{vK0}, s{sT}, v{vQoff}")
cm("V read base: half*14336 + 7168 + (8h+r)*56 + dchunk*8")
e(f"v_bfe_u32 v{vT+1}, v{vLane}, 2, 2")
e(f"v_lshl_add_u32 v{vT+1}, v{vH}, 3, v{vT+1}")
e(f"v_mul_u32_u24 v{vT+1}, 56, v{vT+1}")
e(f"v_and_b32 v{vT+2}, 1, v{vLane}")
e(f"v_lshlrev_b32 v{vT+2}, 2, v{vT+2}")
e(f"v_bfe_u32 v{vT+3}, v{vLane}, 4, 1")
e(f"v_lshl_add_u32 v{vT+2}, v{vT+3}, 1, v{vT+2}")
e(f"v_bfe_u32 v{vT+3}, v{vLane}, 1, 1")
e(f"v_add_u32 v{vT+2}, v{vT+2}, v{vT+3}")
e(f"v_lshl_add_u32 v{vSl0}, v{vT+2}, 3, v{vT+1}")
e(f"s_add_u32 s{sT}, s{sT}, {PIECE}")
e(f"v_add_u32 v{vV0}, s{sT}, v{vSl0}")
e(f"v_cmp_ne_u32 vcc, 7, v{vT+2}")
e(f"v_mul_u32_u24 v{vSl1}, 64, v{vH}")
e(f"v_sub_u32 v{vSl1}, {ONES+224}, v{vSl1}")
e(f"v_mov_b32 v{vK}, v{vK0}")
e(f"v_cndmask_b32 v{vV0}, v{vSl1}, v{vV0}, vcc")
e(f"v_cndmask_b32 v{vOne}, 0, 1, vcc")
e(f"v_mov_b32 v{vV}, v{vV0}")
e(f"v_mov_b32 v{vIdx}, 0xdddddddd")
if D1 == 1: late_first()
if D2 == 1: el(dma(2) + dma(3))
for r in range(OA, OA+32):
    e(f"v_mov_b32 v{r}, 0")
if D1 == 2: late_first()
cm("output staging address: partner region + ql*56 + 32h")
e(f"v_lshl_add_u32 v{vOw}, v{vH}, 3, v{vQoff}")
e(f"v_add_u32 v{vOw}, s{sXr}, v{vOw}")
cm("per-lane scale for the duplicated dims (zero for h=1)")
e(f"v_cmp_eq_u32 vcc, 0, v{vH}")
e(f"v_mov_b32 v{vT}, s{sC}")
e(f"s_mov_b32 s{sI}, 0")
e(f"v_cndmask_b32 v{vT}, 0, v{vT}, vcc")
e(f"s_mov_b32 s{sExp}, 0")
e(f"s_mov_b64 s[{sFast}:{sFast+1}], -1")
e(f"s_bitcmp1_b32 s{sW}, 0")
e(f"s_cselect_b32 s{sLim3}, 0, {ITERS-2}")
if D2 == 2: el(dma(2) + dma(3))
if IPF:
    cm("idle time: each wave pulls one stretch of the epilogue code into the instruction cache / L2")
    e("s_mov_b64 exec, 0")
    for k in range(7):
        e(f"s_cmp_eq_u32 s{sW}, {k}")
        e(f"s_cbranch_scc1 L_pad{k}")
    e("s_branch L_pad7")
    L("L_padret")
    e("s_mov_b64 exec, -1")
if D1 == 3:
    e(f"s_bitcmp1_b32 s{sW}, 1")
    e("s_cbranch_scc1 L_qv")
    e("s_waitcnt vmcnt(1)")
    e("s_branch L_qk")
    L("L_qv")
    e("s_waitcnt vmcnt(0)")
    L("L_qk")
elif D2 == 3:
    e(f"s_waitcnt vmcnt(2)")
else:
    e(f"s_waitcnt vmcnt({5 if PF else 4})")
stamp("q")
if CFG.get("s0diag"):
    for k, n in ((3, "d0"), (2, "d1"), (1, "d2"), (0, "d3")):
        e(f"s_waitcnt vmcnt({k})")
        stamp(n)
if not QD:
    for i in range(4): e(f"ds_read_b64 v[{QA+2*i}:{QA+2*i+1}], v{vQl} offset:{8*i}")
cm("Q prep: bf16 -> f32, * scale*log2(e), -> bf16 (temporaries: the S buffers)")
TT = SA[0]
for hf in range(2):
    if not QD: e(f"s_waitcnt lgkmcnt({2 - hf})")
    for i in range(4*hf, 4*hf+4):
        e(f"v_lshlrev_b32 v{TT+2*i}, 16, v{QA+i}")
        e(f"v_and_b32 v{TT+2*i+1}, 0xffff0000, v{QA+i}")
    for i in range(4*hf, 4*hf+4):
        if i < 2: e(f"v_pk_mul_f32 v[{TT+2*i}:{TT+2*i+1}], v[{TT+2*i}:{TT+2*i+1}], v[{vT}:{vT+1}] op_sel_hi:[1,0]")
        else: e(f"v_pk_mul_f32 v[{TT+2*i}:{TT+2*i+1}], v[{TT+2*i}:{TT+2*i+1}], s[{sC}:{sC+1}]")
    for i in range(4*hf, 4*hf+4):
        e(f"v_cvt_pk_bf16_f32 v{QA+i}, v{TT+2*i}, v{TT+2*i+1}")
    e(f"ds_write_b128 v{vX}, v[{QA+4*hf}:{QA+4*hf+3}] offset:{1024*hf}")
stamp("prep")
if D1 == 3: late_first()
if D2 == 3: el(dma(2) + dma(3))
el(jit())
cm("K loaders: first block landed")
e(f"s_bitcmp1_b32 s{sW}, 1")
e("s_cbranch_scc1 L_bar")
e(f"s_waitcnt vmcnt({4 if PF else 3})")
L("L_bar")
e("s_waitcnt lgkmcnt(0)")
stamp("prebar")
e(f"s_barrier")
stamp("bar")
el(jit())
cm("peeled M(0): QK only")
e("s_setprio 3")
el(kread(KF[0], 0))
e(f"ds_read_b128 v[{QB}:{QB+3}], v{vXr}")
e(f"ds_read_b128 v[{QB+4}:{QB+7}], v{vXr} offset:1024")
e(f"s_waitcnt lgkmcnt(2)")
q = qk(SA[0], KF[0], QA)
e(q[0]); e(q[1])
e(f"s_waitcnt lgkmcnt(0)")
q = qk(SB[0], KF[0], QB)
e(q[0])
e(f"s_cmp_eq_u32 s{sHalf}, 0")
e(q[1])
e("s_cbranch_scc0 L_firstY")
cm("waves 0-3: E(0), then the rest of stage 0 is published")
e("s_setprio 1")
e("s_nop 5")
stamp("e0")
el(ex(SA[0]) + ex(SB[0]))
e("s_setprio 3")
e("s_waitcnt vmcnt(0)")
e("s_barrier")
stamp("bar2")
el(kread(KF[1], 1) + vread(VF[0], 0))
el(jit())
cm("peeled M(1) of waves 0-3: carries their loads of stage 1")
el(setstage(1) + dma(0))
e("s_waitcnt lgkmcnt(0)")
M = qk(SA[1], KF[1], QA) + pv(OA, VF[0], SA[0]) + qk(SB[1], KF[1], QB) + pv(OB, VF[0], SB[0])
kr = kread(KF[0], 2); vr = vread(VF[1], 1)
emit_m(M, [[vr[0]] + dma(1), [vr[1]], [vr[2]] + dma(2), [vr[3]] + dma(3), [kr[0]] + setstage(2), [kr[1]] + dma(0), [kr[2]] + dma(1),
           [kr[3], f"s_mov_b32 s{sNxt}, {SLOT}", f"s_cmp_eq_u32 s{sI}, 1"]])
e("s_branch L_E1")
L("L_firstY")
el(jit())
el(NEXT5)
e("s_waitcnt vmcnt(5)")
e("s_barrier")
stamp("bar2")
el(kread(KF[1], 1) + vread(VF[0], 0))
e("s_branch L_E0")

def mseg(t):
    p = t & 1
    M = qk(SA[p], KF[p], QA) + pv(OA, VF[1-p], SA[1-p]) + qk(SB[p], KF[p], QB) + pv(OB, VF[1-p], SB[1-p])
    kr = kread(KF[1-p], (t + 1) & 3); vr = vread(VF[p], t)
    fill = [[] for _ in range(8)]
    cm(f"M({t})")
    el(jit())
    e("s_setprio 3")
    if t == 0:
        e(f"v_mad_u32_u24 v{vV}, s{sNxt}, v{vOne}, v{vV0}")
    e("s_waitcnt lgkmcnt(0)")
    for i in range(4): fill[i] += [vr[i]]
    if t == 3:
        fill[0] = ["s_waitcnt vmcnt(3)", f"s_cmp_lt_u32 s{sI}, {ITERS-2}", "s_cbranch_scc1 L_w2", "s_waitcnt vmcnt(0)", "L_w2:",
                   f"ds_add_u32 v{vFw}, v{vProg}"] + fill[0]
        fill[1] += [f"s_add_u32 s{sExp}, s{sExp}, 1", f"v_add_u32 v{vK}, s{sNxt}, v{vK0}"]
        fill[2] += dmal(t)
        fill[3] += [f"ds_read_b32 v{vFl}, v{vFr}"]
        fill[5] += ["s_waitcnt lgkmcnt(0)", f"v_cmp_gt_u32 vcc, s{sExp}, v{vFl}", f"s_cbranch_vccnz L_poll", f"L_pollok:", kr[0]]
        fill[6] += [kr[1], kr[2]]
        fill[7] += [kr[3]]
    else:
        for i in range(4): fill[4+i] += [kr[i]]
        fill[5] += dmal(t)
    if t == 0:
        fill[1] += [f"s_add_u32 s{sT}, s{sI}, 2", f"s_and_b32 s{sT}, s{sT}, 3", f"s_mul_i32 s{sT}, s{sT}, {SLOT}"]
        fill[2] += [f"s_add_u32 s{sDm}, s{sT}, s{sDmaL}", f"s_add_u32 s{sStg}, s{sStg}, {PIECE}"]
        if ITERS > 8:
            fill[3] += [f"s_cmp_eq_u32 s{sStg}, {8*PIECE}", f"s_cselect_b32 s{sStg}, 0, s{sStg}"]
    if t == 1:
        fill[6] += [f"s_add_u32 s{sT}, s{sI}, 1", f"s_and_b32 s{sT}, s{sT}, 3", f"s_mul_i32 s{sNxt}, s{sT}, {SLOT}"]
        fill[7] += [f"s_cmp_eq_u32 s{sI}, {ITERS-1}"]
    if t == 3:
        fill[6] += [f"s_add_u32 s{sI}, s{sI}, 1"]
    emit_m(M, fill)
def eseg(E, name):
    cm(name)
    el(jit())
    e("s_setprio 0")
    el(E[:E1])
    e("s_setprio 1")
    el(E[E1:])

out.append(".p2align 6")
L("L_loop")
mseg(0)
L("L_E0")
eseg(ex(SA[0]) + ex(SB[0]), "E(0)")
mseg(1)
L("L_E1")
eseg(ex(SA[1]) + ex(SB[1]), "E(1)")
e("s_cbranch_scc1 L_tail")
mseg(2)
eseg(ex(SA[0]) + ex(SB[0]), "E(2)")
mseg(3)
eseg(ex(SA[1]) + ex(SB[1]), "E(3)")
e("s_branch L_loop")
L(f"L_poll")
e(f"ds_read_b32 v{vFl}, v{vFr}")
e("s_waitcnt lgkmcnt(0)")
e(f"v_cmp_gt_u32 vcc, s{sExp}, v{vFl}")
e(f"s_cbranch_vccnz L_poll")
e(f"s_branch L_pollok")

L("L_tail")
cm("last two key tiles (30, 31): q tile A first, so that its partial sums can be handed over early")
e("s_setprio 3")
stamp("tail")
e("s_waitcnt lgkmcnt(0)")
kr = kread(KF[1], 3); v30 = vread(VF[0], 2); v31 = vread(VF[1], 3)
M = qk(SA[0], KF[0], QA) + pv(OA, VF[1], SA[1]) + pv(OB, VF[1], SB[1]) + qk(SA[1], KF[1], QA)
emit_m(M, [pad() + kr[0:2], kr[2:4], v30[0:2], v30[2:4], [], ["s_waitcnt lgkmcnt(4)"] + v31[0:2], v31[2:4], []])
stamp("t2")
eseg(ex(SA[0]) + ex(SA[1]), "E'(30)")
e("s_setprio 3")
stamp("t3")
e("s_waitcnt lgkmcnt(0)")
el(jit())
xw = [f"ds_write_b128 v{vX}, v[{OA+4*i}:{OA+4*i+3}] offset:{1024*i}" for i in range(4)]
M = pv(OA, VF[0], SA[0]) + pv(OA, VF[1], SA[1]) + qk(SB[0], KF[0], QB) + qk(SB[1], KF[1], QB)
WM = CFG.get("wm", "a")
addf = [f"ds_add_u32 v{vFw}, v{vProg}"]
if WM == "a":
    emit_m(M, [[], [], [], [], ["s_nop 7", "s_nop 1"], xw[0:1], xw[1:3], xw[3:4] + addf + [f"s_add_u32 s{sExp}, s{sExp}, 1"]])
    xw2 = []
elif WM == "b":
    emit_m(M, [[], [], [], [], ["s_nop 7", "s_nop 1"], xw[0:2], xw[2:4] + addf, [f"s_add_u32 s{sExp}, s{sExp}, 1", "s_nop 1"]])
    xw2 = []
elif WM == "c":
    emit_m(M, [[], [], [], [], ["s_nop 7", "s_nop 1"], xw[0:1], xw[1:2], xw[2:3] + [f"s_add_u32 s{sExp}, s{sExp}, 1", "s_nop 1"]])
    xw2 = xw[3:4] + addf
R = SA[0]; P0 = SA[1]
def xreads():
    e(f"ds_read_b32 v{vFl}, v{vFp}")
    for i in (3, 0, 1, 2):
        e(f"ds_read_b128 v[{R+4*i}:{R+4*i+3}], v{vXr} offset:{1024*i}")
E = ex(SB[0]) + ex(SB[1])
PB = pv(OB, VF[0], SB[0]) + pv(OB, VF[1], SB[1])
stamp("t4")
e(f"s_mov_b32 s{sT+1}, 0x71800000")
e(f"s_mov_b32 s{sSo}, 0x207")
e(f"s_cmp_eq_u32 s{sHalf}, 0")
e("s_cbranch_scc0 L_lastY")
eseg(E, "E'(31), waves 0-3")
stamp("t0")
e("s_setprio 3")
e(PB[0]); el(xw2); e(PB[1]); e(PB[2]); e(PB[3])
e("s_branch L_xch_spin")
L("L_lastY")
el(jit())
cm("E'(31), waves 4-7")
if CFG["xr"] == "0": xreads()
el(pad())
e("s_setprio 0")
for i, s in enumerate(E):
    if i == E1: e(f"s_setprio {CFG['pe']}")
    if i == 10:
        e(PB[0]); el(xw2)
    if i == 18:
        e(PB[1])
        if 0 < int(CFG["xr"]) < 32: xreads()
    if i == 27: e(PB[2])
    e(s)
stamp("t0")
e("s_nop 0")
el(pad("s_nop 0"))
e(PB[3])
e(f"s_setprio {CFG['py']}")
if int(CFG["xr"]) >= 32: xreads()
e("s_waitcnt lgkmcnt(4)")
e(f"v_cmp_gt_u32 vcc, s{sExp}, v{vFl}")
e("s_cbranch_vccnz L_xch_spin")
e("s_nop 7")
L("L_xch_ok")
el(jit())
stamp("xok")
e(f"s_waitcnt lgkmcnt(3)")
def padd(r): e(f"v_pk_add_f32 v[{OB+r}:{OB+r+1}], v[{OB+r}:{OB+r+1}], v[{R+r}:{R+r+1}]")
padd(12)
padd(14)
cm("1/l (valid in lanes 32..63) -> all lanes")
e(f"v_rcp_f32 v{vT}, v{OB+12}")
e(f"s_waitcnt lgkmcnt(2)")
padd(0)
e(f"v_mov_b32 v{vT+4}, v{vT}")
padd(2)
e(f"s_waitcnt lgkmcnt(1)")
el(pad())
padd(4)
e(f"v_permlane32_swap_b32 v{vT}, v{vT+4}")
padd(6)
e(f"s_waitcnt lgkmcnt(0)")
padd(8)
padd(10)
cm("safety check of the unshifted exponentials, part 1: l in [1, 2^100]")
e(f"v_cmp_nle_f32 vcc, 1.0, v{OB+12}")
e(f"v_cmp_nge_f32 s[{sT+2}:{sT+3}], s{sT+1}, v{OB+12}")
L("L_fin")
stamp("fin")
def pmul(r): e(f"v_pk_mul_f32 v[{OB+r}:{OB+r+1}], v[{OB+r}:{OB+r+1}], v[{vT+4}:{vT+5}] op_sel_hi:[1,0]")
if CFG.get("w128"):
    for r in range(8, 16, 2): pmul(r)
    for r in range(8, 16, 2): e(f"v_cvt_pk_bf16_f32 v{P0+r//2}, v{OB+r}, v{OB+r+1}")
    cm("upper lanes spill 8 junk bytes into the next row; the second write (in order) covers them")
    e(f"ds_write_b128 v{vOw}, v[{P0+4}:{P0+7}] offset:16")
    for r in range(0, 8, 2): pmul(r)
    for r in range(0, 8, 2): e(f"v_cvt_pk_bf16_f32 v{P0+r//2}, v{OB+r}, v{OB+r+1}")
    e(f"ds_write_b128 v{vOw}, v[{P0}:{P0+3}]")
else:
    for r in range(0, 8, 2): pmul(r)
    for r in range(0, 8, 2): e(f"v_cvt_pk_bf16_f32 v{P0+r//2}, v{OB+r}, v{OB+r+1}")
    e(f"ds_write_b64 v{vOw}, v[{P0}:{P0+1}]")
    e(f"ds_write_b64 v{vOw}, v[{P0+2}:{P0+3}] offset:8")
    el(pad())
    for r in range(8, 16, 2): pmul(r)
    for r in range(8, 16, 2): e(f"v_cvt_pk_bf16_f32 v{P0+r//2}, v{OB+r}, v{OB+r+1}")
    e(f"ds_write_b64 v{vOw}, v[{P0+4}:{P0+5}] offset:16")
    e("s_mov_b32 exec_hi, 0")
    e(f"ds_write_b64 v{vOw}, v[{P0+6}:{P0+7}] offset:24")
    e("s_mov_b32 exec_hi, -1")
e(f"ds_read_b128 v[{P0+8}:{P0+11}], v{vXr}")
e(f"ds_read_b128 v[{P0+12}:{P0+15}], v{vXr} offset:1024")
stamp("stg")
e("s_setprio 0")
el(pad())
cm("part 2: every output finite")
e(f"s_or_b64 vcc, vcc, s[{sT+2}:{sT+3}]")
e(f"v_pk_add_f32 v[{vT+2}:{vT+3}], v[{OB}:{OB+1}], v[{OB+2}:{OB+3}]")
e(f"v_pk_add_f32 v[{vT+6}:{vT+7}], v[{OB+4}:{OB+5}], v[{OB+6}:{OB+7}]")
e(f"v_pk_add_f32 v[{R}:{R+1}], v[{OB+8}:{OB+9}], v[{OB+10}:{OB+11}]")
e(f"v_pk_add_f32 v[{R+2}:{R+3}], v[{OB+12}:{OB+13}], v[{OB+14}:{OB+15}]")
e(f"v_pk_add_f32 v[{vT+2}:{vT+3}], v[{vT+2}:{vT+3}], v[{vT+6}:{vT+7}]")
e(f"v_pk_add_f32 v[{R}:{R+1}], v[{R}:{R+1}], v[{R+2}:{R+3}]")
e(f"s_mov_b32 vcc_lo, 0")
e(f"v_pk_add_f32 v[{vT+2}:{vT+3}], v[{vT+2}:{vT+3}], v[{R}:{R+1}]")
e(f"s_and_b64 vcc, vcc, s[{sFast}:{sFast+1}]")
e(f"v_add_f32 v{vT+2}, v{vT+2}, v{vT+3}")
e(f"v_cmp_class_f32 s[{sT+4}:{sT+5}], v{vT+2}, s{sSo}")
el(pad("s_nop 0"))
e(f"s_and_b64 s[{sT+4}:{sT+5}], s[{sT+4}:{sT+5}], s[{sFast}:{sFast+1}]")
e(f"s_or_b64 vcc, vcc, s[{sT+4}:{sT+5}]")
e("s_cbranch_vccnz L_slow")
e("s_waitcnt lgkmcnt(1)")
e(f"buffer_store_dwordx4 v[{P0+8}:{P0+11}], v{vOl}, s[{rO}:{rO+3}], s{sQrow} offen {ST}")
e("s_mov_b32 exec_hi, 0xffff")
e("s_waitcnt lgkmcnt(0)")
e(f"buffer_store_dwordx4 v[{P0+12}:{P0+15}], v{vOl}, s[{rO}:{rO+3}], s{sQrow} offen offset:1024 {ST}")
if CFG.get("reveal"):
    e("s_memtime s[92:93]")
    e("s_waitcnt lgkmcnt(0)")
    e(f"s_and_b32 s94, s2, {int(CFG.get('rmask', 255))}")
    e(f"s_cmp_eq_u32 s94, {int(CFG.get('rwg', 133))}")
    e("s_cbranch_scc0 L_end")
    if CFG["reveal"] == "end":
        e(f"s_sub_u32 s94, s92, s{sStamp}")
        e(f"s_sub_u32 s94, s94, {int(CFG.get('roff', 24000))}")
        e(f"s_max_i32 s94, s94, 0")
    else:
        e(f"s_sub_u32 s94, s{sStamp+2}, s{sStamp}")
    e("s_lshl_b32 s94, s94, 4")
    L("L_rev")
    e("s_memtime s[96:97]")
    e("s_waitcnt lgkmcnt(0)")
    e("s_sub_u32 s96, s96, s92")
    e("s_cmp_lt_u32 s96, s94")
    e("s_cbranch_scc1 L_rev")
    e("s_branch L_end")
if CFG["stamp"]:
    stamp("st")
    e("s_waitcnt vmcnt(0)")
    stamp("end")
    e("s_memrealtime s[74:75]")
    e("s_load_dwordx2 s[76:77], s[0:1], 40")
    e("s_waitcnt lgkmcnt(0)")
    e("s_mov_b32 s78, 0x100000")
    e("s_mov_b32 s79, 0x00020000")
    e("s_mov_b64 exec, 1")
    e(f"s_lshl_b32 s82, s2, 3")
    e(f"s_add_u32 s82, s82, s{sW}")
    e(f"s_mul_i32 s82, s82, 48")
    e("v_mov_b32 v3, s82")
    for k in range(8):
        e(f"v_mov_b32 v{4+k}, s{sStamp+2*k}")
    e("v_mov_b32 v12, s72")
    e("v_mov_b32 v13, s74")
    e("s_getreg_b32 s80, hwreg(HW_REG_XCC_ID)")
    e("v_mov_b32 v14, s80")
    e("buffer_store_dwordx4 v[4:7], v3, s[76:79], 0 offen")
    e("buffer_store_dwordx4 v[8:11], v3, s[76:79], 0 offen offset:16")
    e("buffer_store_dwordx4 v[12:15], v3, s[76:79], 0 offen offset:32")
L("L_end")
e("s_endpgm")
cm("wait for the partner's partial sums")
L("L_xch_spin")
e(f"ds_read_b32 v{vFl}, v{vFp}")
e("s_waitcnt lgkmcnt(0)")
e(f"v_cmp_gt_u32 vcc, s{sExp}, v{vFl}")
e("s_cbranch_vccnz L_xch_spin")
xreads()
e(f"s_setprio {CFG['px']}")
e("s_nop 0")
el(pad("s_nop 0"))
e("s_branch L_xch_ok")

cm("fallback: exact online-max softmax for this wave's 32 queries (tile B), all 2048 keys")
L("L_slow")
e("s_waitcnt lgkmcnt(0)")
e(f"s_mov_b64 s[{sFast}:{sFast+1}], 0")
QR = QA; S = SA[0]; vM = vT; vMn = vT + 1; vAl = vT + 2; vKo = vT + 4; vVo = vT + 5; vVa = vT + 6
e(f"s_mov_b32 s{rK+2}, {BUFSZ}")
e(f"s_mov_b32 s{rK+3}, 0x00020000")
e(f"s_mov_b32 s{rV+2}, {BUFSZ}")
e(f"s_mov_b32 s{rV+3}, 0x00020000")
e(f"buffer_load_dwordx4 v[{QR}:{QR+3}], v{vQoff}, s[{rQ}:{rQ+3}], s{sQrow} offen")
e(f"buffer_load_dwordx4 v[{QR+4}:{QR+7}], v{vQoff}, s[{rQ}:{rQ+3}], s{sQrow} offen offset:16")
e(f"v_add_u32 v{vKo}, s{sHead}, v{vQoff}")
e(f"v_add_u32 v{vVo}, s{sHead}, v{vOl}")
e(f"v_add_u32 v{vVa}, s{sXr}, v{vSl0}")
e(f"v_cmp_eq_u32 vcc, 1, v{vOne}")
e(f"s_mov_b32 m0, s{sXr}")
e(f"v_mov_b32 v{vM}, 0xff7fffff")
e(f"v_cndmask_b32 v{vVa}, v{vSl1}, v{vVa}, vcc")
for r in range(16): e(f"v_mov_b32 v{OB+r}, 0")
e(f"v_cmp_eq_u32 vcc, 0, v{vH}")
e(f"s_mov_b32 s{sStg}, 0")
e("s_waitcnt vmcnt(0)")
e(f"v_cndmask_b32 v{QR}, 0, v{QR}, vcc")
e(f"v_cndmask_b32 v{QR+1}, 0, v{QR+1}, vcc")
L("L_slow_loop")
for i in range(4):
    e(f"buffer_load_dwordx2 v[{KF[0]+2*i}:{KF[0]+2*i+1}], v{vKo}, s[{rK}:{rK+3}], s{sStg} offen offset:{8*i}")
e(f"buffer_load_dwordx4 v{vVo}, s[{rV}:{rV+3}], s{sStg} offen lds")
e(f"buffer_load_dwordx4 v{vVo}, s[{rV}:{rV+3}], s{sStg} offen offset:1024 lds")
e("s_waitcnt vmcnt(0)")
el(vread(VF[0], 0, vVa))
q = qk(S, KF[0], QR)
e(q[0]); e(q[1])
e("s_nop 15")
e(f"v_max3_f32 v{vMn}, v{S}, v{S+1}, v{vM}")
for r in range(2, 16, 2):
    e(f"v_max3_f32 v{vMn}, v{S+r}, v{S+r+1}, v{vMn}")
e(f"v_mov_b32 v{vAl}, v{vMn}")
e("s_nop 1")
e(f"v_permlane32_swap_b32 v{vMn}, v{vAl}")
e("s_nop 1")
e(f"v_max_f32 v{vMn}, v{vMn}, v{vAl}")
e(f"v_sub_f32 v{vAl}, v{vM}, v{vMn}")
e(f"v_mul_f32 v{vAl}, s{sC}, v{vAl}")
e(f"v_exp_f32 v{vAl}, v{vAl}")
e(f"v_mov_b32 v{vM}, v{vMn}")
for r in range(16):
    e(f"v_sub_f32 v{S+r}, v{S+r}, v{vM}")
    e(f"v_mul_f32 v{S+r}, s{sC}, v{S+r}")
    e(f"v_exp_f32 v{S+r}, v{S+r}")
for r in range(16):
    e(f"v_mul_f32 v{OB+r}, v{vAl}, v{OB+r}")
e("s_waitcnt lgkmcnt(0)")
e("s_nop 1")
P = pv(OB, VF[0], S)
e(P[0]); e(P[1])
e("s_nop 15")
e(f"s_add_u32 s{sStg}, s{sStg}, 1792")
e(f"s_cmp_lt_u32 s{sStg}, {HEADB}")
e("s_cbranch_scc1 L_slow_loop")
e(f"v_rcp_f32 v{vT}, v{OB+12}")
e("s_nop 0")
e(f"v_mov_b32 v{vT+4}, v{vT}")
e("s_nop 1")
e(f"v_permlane32_swap_b32 v{vT}, v{vT+4}")
e("s_nop 1")
e("s_branch L_fin")

out.append('.section .rodata,"a"')
out.append(".p2align 6")
out.append(f".amdhsa_kernel {NAME}_kernel")
out.append(f"  .amdhsa_next_free_vgpr {NVGPR}")
out.append("  .amdhsa_next_free_sgpr 102")
out.append(f"  .amdhsa_accum_offset {NVGPR}")
out.append("  .amdhsa_group_segment_fixed_size 0")
out.append("  .amdhsa_kernarg_size 48")
out.append("  .amdhsa_user_sgpr_count 2")
out.append("  .amdhsa_user_sgpr_kernarg_segment_ptr 1")
out.append("  .amdhsa_system_sgpr_workgroup_id_x 1")
out.append(".end_amdhsa_kernel")
open(sys.argv[1], "w").write("\n".join(out) + "\n")
```

```python
import sys, struct, math
NAME = "standalone__fused_io_aware_attn__prompt"
HEADER = open("cdna_kernels/%s.s.ref" % NAME).read().split("; Override launch")[0]

CFG = dict(stamp=False, e1=7, st="sc1", df="nt", qf="nt", xr="0", d1=0, d2=3, px=3, py=1, pe=2, qdirect=True, cpf=3)
for a in sys.argv[2:]:
    k, v = a.split("=")
    CFG[k] = {"True": True, "False": False, "None": None}.get(v, v)
ITERS = int(CFG.get("iters", 8))
E1 = int(CFG["e1"])
DF = CFG["df"].replace("+", " "); QF = CFG["qf"].replace("+", " "); ST = CFG["st"].replace("+", " ")

BUFSZ = 3670016
HEADB = 114688
PIECE = 7168
SLOT = 4 * PIECE
NSLOT = 4
ONES = NSLOT * SLOT
XCH = ONES + 8192
FLAG = XCH + 8 * 4096
LDS = FLAG + 2048
c = (28 ** -0.5) * math.log2(math.e)
CBITS = struct.unpack("<I", struct.pack("<f", c))[0]

vFp = 1; vOw = 2; vOl = 3
SA = [4, 20]; SB = [36, 52]; OA = 68; OB = 84
QA = 100; QB = 108
KF = [116, 124]; VF = [132, 140]
vK = 148; vV = 149; vK0 = 150; vV0 = 151; vOne = 152; vIdx = 153; vDma = 154
vLane = 155; vH = 156; vQoff = 157; vX = 158; vQl = 159; vXr = 160; vFw = 161; vFr = 162; vProg = 163; vFl = 164
vSl0 = 165; vSl1 = 166
vT = 168
NVGPR = 176
sQ = 4; sKp = 6; sVp = 8; sO = 10
rQ = 12; rD = 16; rO = 20; rK = 24; rV = 28
sW = 32; sHalf = 33; sHead = 34; sI = 35; sLim3 = 36; sNxt = 37; sDm = 38; sDmaL = 39; sStg = 40; sOff3 = 41
sC = 42
sT = 44
sXr = 50; sSo = 51; sQrow = 52; sQA = 53; sExp = 88; sFast = 90; sPf = 89; rP = 24; vPf = 167
sStamp = 56

out = []
def e(s): out.append(s if s.endswith(":") else "    " + s)
def el(l):
    for s in l: e(s)
def L(s): out.append(s + ":")
def cm(s): out.append("    ; " + s)

def qk(S, Kf, Q):
    return [f"v_mfma_f32_32x32x16_bf16 v[{S}:{S+15}], v[{Kf}:{Kf+3}], v[{Q}:{Q+3}], 0",
            f"v_mfma_f32_32x32x16_bf16 v[{S}:{S+15}], v[{Kf+4}:{Kf+7}], v[{Q+4}:{Q+7}], v[{S}:{S+15}]"]
def pv(O, Vf, S):
    return [f"v_smfmac_f32_32x32x32_bf16 v[{O}:{O+15}], v[{Vf}:{Vf+3}], v[{S}:{S+7}], v{vIdx}",
            f"v_smfmac_f32_32x32x32_bf16 v[{O}:{O+15}], v[{Vf+4}:{Vf+7}], v[{S+8}:{S+15}], v{vIdx}"]
def ex(S): return [f"v_exp_f32 v{S+i}, v{S+i}" for i in range(16)]
def kread(dst, tile, addr=vK): return [f"ds_read_b64 v[{dst+2*i}:{dst+2*i+1}], v{addr} offset:{tile*1792+8*i}" for i in range(4)]
def vread(dst, tile, addr=vV):
    return [f"ds_read_b64_tr_b16 v[{dst+2*i}:{dst+2*i+1}], v{addr} offset:{tile*1792+(i>>1)*896+(i&1)*224}" for i in range(4)]
def dma(t):
    off = ["0", "2048", "4096", f"s{sOff3}"][t]
    return [f"s_add_u32 m0, s{sDm}, {off}", f"s_add_u32 s{sSo}, s{sStg}, {off}",
            f"buffer_load_dwordx4 v{vDma}, s[{rD}:{rD+3}], s{sSo} offen {DF} lds"]
def dmal(t):
    lim = f"s{sLim3}" if t == 3 else str(ITERS - 2)
    return [f"s_cmp_lt_u32 s{sI}, {lim}", f"s_cbranch_scc0 L_nodma{t}"] + dma(t) + [f"L_nodma{t}:"]
def setstage(st): return [f"s_add_u32 s{sDm}, s{sDmaL}, {st*SLOT}", f"s_mov_b32 s{sStg}, {st*PIECE}"]
NEXT5 = setstage(1) + dma(0) + dma(1) + dma(2) + dma(3) + setstage(2) + dma(0)
def emit_m(M, fill):
    for g in range(len(M)):
        e(M[g]); el(fill[g])
nj = [0]
def jit():
    if not CFG.get("jit"): return []
    k = nj[0]; nj[0] += 1
    return ["s_cselect_b32 s99, 1, 0", "s_memtime s[96:97]", "s_waitcnt lgkmcnt(0)", f"s_mul_i32 s96, s96, {2654435761 & 0x7fffffff}", f"s_add_u32 s96, s96, s{sW}",
            "s_mul_i32 s96, s96, 40503", "s_lshr_b32 s96, s96, 26", "s_mul_i32 s97, s96, s96", "s_lshr_b32 s96, s97, 6", f"L_jit{k}:", "s_sleep 1", "s_sub_u32 s96, s96, 1",
            "s_cmp_gt_i32 s96, 0", f"s_cbranch_scc1 L_jit{k}", "s_cmp_eq_u32 s99, 1"]
IPF = int(CFG.get("ipf", 0))
npad = [0]
def pad(alt=None):
    if IPF and npad[0] < 8:
        k = npad[0]; npad[0] += 1
        return [f"L_pad{k}:", "s_cbranch_execz L_padret"]
    return [alt] if alt else []
nstamp = [0]
STS = CFG.get("sts", "start,q,bar,bar2,tail,t0,st,end").split(",")
def stamp(name):
    if CFG["stamp"] and name in STS:
        k = STS.index(name)
        e(f"s_memtime s[{sStamp+2*k}:{sStamp+2*k+1}]")

out.append(HEADER.rstrip())
out.append(f"; @launch grid=(256,1,1) block=(512,1,1) lds={LDS}")
out.append('.amdgcn_target "amdgcn-amd-amdhsa--gfx950"')
out.append("""; Fused attention forward, one workgroup (8 waves) per 256 queries of one head; blocks that share a head get the same b%8.
;    exchange the scaled q tile at the start and one partial output tile at the end through LDS.
;  * softmax shift: stand-in 0. Run-time check at the end (1 <= l <= 2^100 and every output finite); a wave that
;  * K/V stream through a 4-slot LDS ring (LDS-DMA); per-wave progress counters in LDS publish / release the slots.""")
out.append(".text")
out.append(f".globl {NAME}_kernel")
out.append(".p2align 8")
out.append(f".type {NAME}_kernel,@function")
L(f"{NAME}_kernel")
stamp("start")
GL = CFG.get("gl")
if GL:
    e(f"s_load_dwordx8 s[4:11], s[0:1], 0")
else:
    e(f"s_load_dwordx2 s[{rQ}:{rQ+1}], s[0:1], 0")
    e(f"s_load_dwordx2 s[{rK}:{rK+1}], s[0:1], 8")
    e(f"s_load_dwordx2 s[{rV}:{rV+1}], s[0:1], 16")
    e(f"s_load_dwordx2 s[{rO}:{rO+1}], s[0:1], 24")
e("s_cmp_ge_u32 s2, 256")
e("s_cbranch_scc1 L_end")
if CFG["stamp"]:
    e(f"s_memrealtime s[72:73]")
CPF = int(CFG.get("cpf", 0))
if CPF:
    cm("one wave touches the kernel's own code lines (128 B apart) so that later instruction fetches hit in L2")
    e(f"v_subrev_u32 v{vT+2}, {CPF*64}, v0")
    e(f"s_getpc_b64 s[{sT}:{sT+1}]")
    L("L_pc")
    e(f"v_cmp_gt_u32 vcc, {int(CFG.get('ncpf', 38))}, v{vT+2}")
    e(f"s_and_saveexec_b64 s[{sT+2}:{sT+3}], vcc")
    e("s_cbranch_execz L_nocpf")
    e(f"v_lshlrev_b32 v{vT+2}, 7, v{vT+2}")
    e(f"v_mov_b32 v{vT+3}, s{sT+1}")
    e(f"v_add_co_u32 v{vT+2}, vcc, s{sT}, v{vT+2}")
    e("s_nop 1")
    e(f"v_addc_co_u32 v{vT+3}, vcc, 0, v{vT+3}, vcc")
    e(f"global_load_dword v167, v[{vT+2}:{vT+3}], off {CFG.get('cf','')}")
    L("L_nocpf")
    e(f"s_mov_b64 exec, s[{sT+2}:{sT+3}]")
cm("head = (b&7)*4 + (b>>6) ; q block = (b>>3)&7 ; wave w owns q tile A = w and B = w^4 of the block")
e(f"v_lshrrev_b32 v{vT}, 1, v0")
e(f"s_and_b32 s{sT}, s2, 7")
e(f"v_bfi_b32 v{vT}, 31, v0, v{vT}")
e(f"s_mul_i32 s{sT}, s{sT}, {4*HEADB}")
e(f"v_bfe_u32 v{vH}, v0, 5, 1")
e(f"s_and_b32 s{sT+1}, s2, 0xf8")
e(f"v_mul_u32_u24 v{vT}, 56, v{vT}")
e(f"s_mul_i32 s{sT+1}, s{sT+1}, 1792")
e(f"v_mad_u32_u24 v{vQl}, v{vH}, 24, v{vT}")
e(f"s_add_u32 s{sQA}, s{sT}, s{sT+1}")
e(f"v_lshrrev_b32 v1, 6, v0")
e(f"s_mov_b32 s{rQ+2}, {BUFSZ}")
e(f"s_mov_b32 s{rQ+3}, 0x00020000")
e(f"v_readfirstlane_b32 s{sW}, v1")
e(f"v_and_b32 v{vLane}, 63, v0")
e(f"s_lshr_b32 s{sT+1}, s2, 6")
e(f"s_mul_i32 s{sT+1}, s{sT+1}, {HEADB}")
e(f"s_add_u32 s{sHead}, s{sT}, s{sT+1}")
e(f"v_lshlrev_b32 v{vOl}, 4, v{vLane}")
cm("DMA lane offset: head + half*57344 + (w&1)*1024 + lane*16 ; LDS piece offset (w>>1)*7168 + (w&1)*1024")
e(f"s_lshr_b32 s{sHalf}, s{sW}, 2")
e(f"s_and_b32 s{sT+4}, s{sW}, 1")
e(f"s_mul_i32 s{sT+3}, s{sHalf}, 57344")
e(f"s_lshl_b32 s{sT+4}, s{sT+4}, 10")
e(f"s_add_u32 s{sT+3}, s{sT+3}, s{sHead}")
e(f"s_lshr_b32 s{sT+5}, s{sW}, 1")
e(f"s_add_u32 s{sT+3}, s{sT+3}, s{sT+4}")
e(f"s_mul_i32 s{sDmaL}, s{sT+5}, {PIECE}")
e(f"v_add_u32 v{vDma}, s{sT+3}, v{vOl}")
e(f"s_add_u32 s{sDmaL}, s{sDmaL}, s{sT+4}")
e(f"s_mov_b32 s{rD+2}, {BUFSZ}")
e(f"s_mov_b32 s{rD+3}, 0x00020000")
QD = CFG.get("qdirect"); PF = 0
if QD:
    e(f"s_mov_b32 m0, s{sDmaL}")
else:
    e(f"s_lshl_b32 s{sT}, s{sW}, 12")
    e(f"s_add_u32 m0, s{sT}, {XCH+2048}")
    e(f"s_mul_i32 s{sT}, s{sW}, 1792")
    e(f"s_add_u32 s{sT+2}, s{sT}, s{sQA}")
if GL: e(f"v_add_u32 v{vT+1}, s{sQA}, v{vQl}")
e(f"s_bitcmp1_b32 s{sW}, 1")
e(f"s_waitcnt lgkmcnt(0)")
stamp("karg")
if GL:
    e(f"global_load_dwordx4 v[{QA}:{QA+3}], v{vT+1}, s[4:5] {QF}")
    e(f"global_load_dwordx4 v[{QA+4}:{QA+7}], v{vT+1}, s[4:5] offset:16 {QF}")
    e("s_cbranch_scc1 L_k0")
    e(f"global_load_lds_dwordx4 v{vDma}, s[6:7] {DF}")
    L("L_k0")
    for r, p in ((rQ, 4), (rK, 6), (rV, 8), (rO, 10)):
        e(f"s_mov_b32 s{r}, s{p}")
        e(f"s_mov_b32 s{r+1}, s{p+1}")
elif QD:
    e(f"buffer_load_dwordx4 v[{QA}:{QA+3}], v{vQl}, s[{rQ}:{rQ+3}], s{sQA} offen {QF}")
    e(f"buffer_load_dwordx4 v[{QA+4}:{QA+7}], v{vQl}, s[{rQ}:{rQ+3}], s{sQA} offen offset:16 {QF}")
else:
    e(f"buffer_load_dwordx4 v{vOl}, s[{rQ}:{rQ+3}], s{sT+2} offen {QF} lds")
    e("s_mov_b32 exec_hi, 0xffff")
    e(f"buffer_load_dwordx4 v{vOl}, s[{rQ}:{rQ+3}], s{sT+2} offen offset:1024 {QF} lds")
    e("s_mov_b32 exec_hi, -1")
    e(f"s_mov_b32 m0, s{sDmaL}")
e(f"s_cselect_b32 s{rD}, s{rV}, s{rK}")
e(f"s_cselect_b32 s{rD+1}, s{rV+1}, s{rK+1}")
if not GL:
    cm("K loaders fetch their first block right away, V loaders a little later")
    e("s_cbranch_scc1 L_k0")
    e(f"buffer_load_dwordx4 v{vDma}, s[{rD}:{rD+3}], 0 offen {DF} lds")
    L("L_k0")
e(f"s_sub_u32 s{sOff3}, 6144, s{sT+4}")
e(f"s_mov_b32 s{sDm}, s{sDmaL}")
e(f"s_mov_b32 s{sStg}, 0")
cm("exchange region: mine s(sT), partner's sXr ; tile B rows")
e(f"s_lshl_b32 s{sT}, s{sW}, 12")
e(f"s_add_u32 s{sT}, s{sT}, {XCH}")
e(f"s_xor_b32 s{sT+1}, s{sW}, 4")
e(f"s_mul_i32 s{sT+2}, s{sT+1}, 1792")
e(f"s_add_u32 s{sQrow}, s{sQA}, s{sT+2}")
e(f"s_lshl_b32 s{sT+1}, s{sT+1}, 12")
e(f"s_add_u32 s{sXr}, s{sT+1}, {XCH}")
e(f"v_add_u32 v{vX}, s{sT}, v{vOl}")
e(f"v_add_u32 v{vXr}, s{sXr}, v{vOl}")
cm("vQoff = rho*56 + 24h")
e(f"s_mul_i32 s{sT}, s{sW}, 1792")
e(f"v_subrev_u32 v{vQoff}, s{sT}, v{vQl}")
if not QD:
    e(f"s_lshl_b32 s{sT}, s{sW}, 12")
    e(f"s_add_u32 s{sT}, s{sT}, {XCH+2048}")
    e(f"v_add_u32 v{vQl}, s{sT}, v{vQoff}")
el(jit())
cm("remaining setup in the shadow of the loads")
e(f"s_mov_b32 s{rO+2}, {BUFSZ}")
e(f"s_mov_b32 s{rO+3}, 0x00020000")
e(f"s_mov_b32 s{sC}, {hex(CBITS)}")
e(f"s_mov_b32 s{sC+1}, {hex(CBITS)}")
def late_first():
    e(f"s_bitcmp1_b32 s{sW}, 1")
    e("s_cbranch_scc0 L_v0")
    e(f"s_mov_b32 m0, s{sDm}")
    e("s_nop 0")
    e(f"buffer_load_dwordx4 v{vDma}, s[{rD}:{rD+3}], 0 offen {DF} lds")
    L("L_v0")
    el(dma(1))
D1 = int(CFG.get("d1", 1)); D2 = int(CFG.get("d2", 2))
if D1 == -1: late_first()
if D2 == -1: el(dma(2) + dma(3))
cm("ones region: 512 threads x 16 B of (1,0,0,0) ; progress flags = 0")
e(f"v_mov_b32 v{vT+4}, 0x3f80")
e(f"v_mov_b32 v{vT+5}, 0")
e(f"v_mov_b32 v{vT+6}, 0x3f80")
e(f"v_mov_b32 v{vT+7}, 0")
e(f"v_lshlrev_b32 v{vT+1}, 4, v0")
e(f"v_add_u32 v{vT+1}, {ONES}, v{vT+1}")
e(f"ds_write_b128 v{vT+1}, v[{vT+4}:{vT+7}]")
e(f"v_lshlrev_b32 v{vFw}, 2, v0")
e(f"v_add_u32 v{vFw}, {FLAG}, v{vFw}")
e(f"ds_write_b32 v{vFw}, v{vT+5}")
e(f"v_and_b32 v{vT+2}, 3, v{vLane}")
e(f"v_lshlrev_b32 v{vT+2}, 8, v{vT+2}")
e(f"v_lshl_add_u32 v{vT+2}, v{vLane}, 2, v{vT+2}")
e(f"s_lshl_b32 s{sT}, s{sHalf}, 10")
e(f"s_add_u32 s{sT}, s{sT}, {FLAG}")
e(f"v_add_u32 v{vFr}, s{sT}, v{vT+2}")
e(f"v_xor_b32 v{vFp}, 1024, v{vFw}")
e(f"v_mov_b32 v{vProg}, 1")
def late_first():
    e(f"s_bitcmp1_b32 s{sW}, 1")
    e("s_cbranch_scc0 L_v0")
    e(f"s_mov_b32 m0, s{sDm}")
    e("s_nop 0")
    e(f"buffer_load_dwordx4 v{vDma}, s[{rD}:{rD+3}], 0 offen {DF} lds")
    L("L_v0")
    el(dma(1))
D1 = int(CFG.get("d1", 1)); D2 = int(CFG.get("d2", 2))
if D1 == 0: late_first()
if D2 == 0: el(dma(2) + dma(3))
cm("K read base")
e(f"s_mul_i32 s{sT}, s{sHalf}, {2*PIECE}")
e(f"v_add_u32 v{vK0}, s{sT}, v{vQoff}")
cm("V read base: half*14336 + 7168 + (8h+r)*56 + dchunk*8")
e(f"v_bfe_u32 v{vT+1}, v{vLane}, 2, 2")
e(f"v_lshl_add_u32 v{vT+1}, v{vH}, 3, v{vT+1}")
e(f"v_mul_u32_u24 v{vT+1}, 56, v{vT+1}")
e(f"v_and_b32 v{vT+2}, 1, v{vLane}")
e(f"v_lshlrev_b32 v{vT+2}, 2, v{vT+2}")
e(f"v_bfe_u32 v{vT+3}, v{vLane}, 4, 1")
e(f"v_lshl_add_u32 v{vT+2}, v{vT+3}, 1, v{vT+2}")
e(f"v_bfe_u32 v{vT+3}, v{vLane}, 1, 1")
e(f"v_add_u32 v{vT+2}, v{vT+2}, v{vT+3}")
e(f"v_lshl_add_u32 v{vSl0}, v{vT+2}, 3, v{vT+1}")
e(f"s_add_u32 s{sT}, s{sT}, {PIECE}")
e(f"v_add_u32 v{vV0}, s{sT}, v{vSl0}")
e(f"v_cmp_ne_u32 vcc, 7, v{vT+2}")
e(f"v_mul_u32_u24 v{vSl1}, 64, v{vH}")
e(f"v_sub_u32 v{vSl1}, {ONES+224}, v{vSl1}")
e(f"v_mov_b32 v{vK}, v{vK0}")
e(f"v_cndmask_b32 v{vV0}, v{vSl1}, v{vV0}, vcc")
e(f"v_cndmask_b32 v{vOne}, 0, 1, vcc")
e(f"v_mov_b32 v{vV}, v{vV0}")
e(f"v_mov_b32 v{vIdx}, 0xdddddddd")
if D1 == 1: late_first()
if D2 == 1: el(dma(2) + dma(3))
for r in range(OA, OA+32):
    e(f"v_mov_b32 v{r}, 0")
if D1 == 2: late_first()
cm("output staging address: partner region + ql*56 + 32h")
e(f"v_lshl_add_u32 v{vOw}, v{vH}, 3, v{vQoff}")
e(f"v_add_u32 v{vOw}, s{sXr}, v{vOw}")
cm("per-lane scale for the duplicated dims (zero for h=1)")
e(f"v_cmp_eq_u32 vcc, 0, v{vH}")
e(f"v_mov_b32 v{vT}, s{sC}")
e(f"s_mov_b32 s{sI}, 0")
e(f"v_cndmask_b32 v{vT}, 0, v{vT}, vcc")
e(f"s_mov_b32 s{sExp}, 0")
e(f"s_mov_b64 s[{sFast}:{sFast+1}], -1")
e(f"s_bitcmp1_b32 s{sW}, 0")
e(f"s_cselect_b32 s{sLim3}, 0, {ITERS-2}")
if D2 == 2: el(dma(2) + dma(3))
if IPF:
    cm("idle time: each wave pulls one stretch of the epilogue code into the instruction cache / L2")
    e("s_mov_b64 exec, 0")
    for k in range(7):
        e(f"s_cmp_eq_u32 s{sW}, {k}")
        e(f"s_cbranch_scc1 L_pad{k}")
    e("s_branch L_pad7")
    L("L_padret")
    e("s_mov_b64 exec, -1")
if D1 == 3:
    e(f"s_bitcmp1_b32 s{sW}, 1")
    e("s_cbranch_scc1 L_qv")
    e("s_waitcnt vmcnt(1)")
    e("s_branch L_qk")
    L("L_qv")
    e("s_waitcnt vmcnt(0)")
    L("L_qk")
elif D2 >= 3:
    e(f"s_waitcnt vmcnt(2)")
else:
    e(f"s_waitcnt vmcnt({5 if PF else 4})")
stamp("q")
if CFG.get("s0diag"):
    for k, n in ((3, "d0"), (2, "d1"), (1, "d2"), (0, "d3")):
        e(f"s_waitcnt vmcnt({k})")
        stamp(n)
if not QD:
    for i in range(4): e(f"ds_read_b64 v[{QA+2*i}:{QA+2*i+1}], v{vQl} offset:{8*i}")
cm("Q prep: bf16 -> f32, * scale*log2(e), -> bf16 (temporaries: the S buffers)")
TT = SA[0]
for hf in range(2):
    if not QD: e(f"s_waitcnt lgkmcnt({2 - hf})")
    for i in range(4*hf, 4*hf+4):
        e(f"v_lshlrev_b32 v{TT+2*i}, 16, v{QA+i}")
        e(f"v_and_b32 v{TT+2*i+1}, 0xffff0000, v{QA+i}")
    for i in range(4*hf, 4*hf+4):
        if i < 2: e(f"v_pk_mul_f32 v[{TT+2*i}:{TT+2*i+1}], v[{TT+2*i}:{TT+2*i+1}], v[{vT}:{vT+1}] op_sel_hi:[1,0]")
        else: e(f"v_pk_mul_f32 v[{TT+2*i}:{TT+2*i+1}], v[{TT+2*i}:{TT+2*i+1}], s[{sC}:{sC+1}]")
    for i in range(4*hf, 4*hf+4):
        e(f"v_cvt_pk_bf16_f32 v{QA+i}, v{TT+2*i}, v{TT+2*i+1}")
    e(f"ds_write_b128 v{vX}, v[{QA+4*hf}:{QA+4*hf+3}] offset:{1024*hf}")
stamp("prep")
if D1 == 3: late_first()
if D2 == 3: el(dma(2) + dma(3))
el(jit())
cm("K loaders: first block landed")
if D2 == 4:
    e(f"s_cmp_eq_u32 s{sHalf}, 0")
    e("s_cbranch_scc0 L_by")
    el(dma(2) + dma(3))
    e("s_waitcnt vmcnt(3)")
    e("s_branch L_bar")
    L("L_by")
    e(f"s_bitcmp1_b32 s{sW}, 1")
    e("s_cbranch_scc1 L_bar")
    e(f"s_waitcnt vmcnt(1)")
else:
    e(f"s_bitcmp1_b32 s{sW}, 1")
    e("s_cbranch_scc1 L_bar")
    e(f"s_waitcnt vmcnt({4 if PF else 3})")
L("L_bar")
e("s_waitcnt lgkmcnt(0)")
stamp("prebar")
e(f"s_barrier")
stamp("bar")
el(jit())
cm("peeled M(0): QK only")
e("s_setprio 3")
el(kread(KF[0], 0))
e(f"ds_read_b128 v[{QB}:{QB+3}], v{vXr}")
e(f"ds_read_b128 v[{QB+4}:{QB+7}], v{vXr} offset:1024")
e(f"s_waitcnt lgkmcnt(2)")
q = qk(SA[0], KF[0], QA)
e(q[0]); e(q[1])
e(f"s_waitcnt lgkmcnt(0)")
q = qk(SB[0], KF[0], QB)
e(q[0])
e(f"s_cmp_eq_u32 s{sHalf}, 0")
e(q[1])
e("s_cbranch_scc0 L_firstY")
cm("waves 0-3: E(0), then the rest of stage 0 is published")
e("s_setprio 1")
e("s_nop 5")
stamp("e0")
el(ex(SA[0]) + ex(SB[0]))
e("s_setprio 3")
e("s_waitcnt vmcnt(0)")
e("s_barrier")
stamp("bar2")
el(kread(KF[1], 1) + vread(VF[0], 0))
el(jit())
cm("peeled M(1) of waves 0-3: carries their loads of stage 1")
el(setstage(1) + dma(0))
e("s_waitcnt lgkmcnt(0)")
M = qk(SA[1], KF[1], QA) + pv(OA, VF[0], SA[0]) + qk(SB[1], KF[1], QB) + pv(OB, VF[0], SB[0])
kr = kread(KF[0], 2); vr = vread(VF[1], 1)
emit_m(M, [[vr[0]] + dma(1), [vr[1]], [vr[2]] + dma(2), [vr[3]] + dma(3), [kr[0]] + setstage(2), [kr[1]] + dma(0), [kr[2]] + dma(1),
           [kr[3], f"s_mov_b32 s{sNxt}, {SLOT}", f"s_cmp_eq_u32 s{sI}, 1"]])
e("s_branch L_E1")
L("L_firstY")
el(jit())
if D2 == 4: el(dma(2) + dma(3))
el(NEXT5)
e("s_waitcnt vmcnt(5)")
e("s_barrier")
stamp("bar2")
el(kread(KF[1], 1) + vread(VF[0], 0))
e("s_branch L_E0")

def mseg(t):
    p = t & 1
    M = qk(SA[p], KF[p], QA) + pv(OA, VF[1-p], SA[1-p]) + qk(SB[p], KF[p], QB) + pv(OB, VF[1-p], SB[1-p])
    kr = kread(KF[1-p], (t + 1) & 3); vr = vread(VF[p], t)
    fill = [[] for _ in range(8)]
    cm(f"M({t})")
    el(jit())
    e("s_setprio 3")
    if t == 0:
        e(f"v_mad_u32_u24 v{vV}, s{sNxt}, v{vOne}, v{vV0}")
    e("s_waitcnt lgkmcnt(0)")
    for i in range(4): fill[i] += [vr[i]]
    if t == 3:
        fill[0] = ["s_waitcnt vmcnt(3)", f"s_cmp_lt_u32 s{sI}, {ITERS-2}", "s_cbranch_scc1 L_w2", "s_waitcnt vmcnt(0)", "L_w2:",
                   f"ds_add_u32 v{vFw}, v{vProg}"] + fill[0]
        fill[1] += [f"s_add_u32 s{sExp}, s{sExp}, 1", f"v_add_u32 v{vK}, s{sNxt}, v{vK0}"]
        fill[2] += dmal(t)
        fill[3] += [f"ds_read_b32 v{vFl}, v{vFr}"]
        fill[5] += ["s_waitcnt lgkmcnt(0)", f"v_cmp_gt_u32 vcc, s{sExp}, v{vFl}", f"s_cbranch_vccnz L_poll", f"L_pollok:", kr[0]]
        fill[6] += [kr[1], kr[2]]
        fill[7] += [kr[3]]
    else:
        for i in range(4): fill[4+i] += [kr[i]]
        fill[5] += dmal(t)
    if t == 0:
        fill[1] += [f"s_add_u32 s{sT}, s{sI}, 2", f"s_and_b32 s{sT}, s{sT}, 3", f"s_mul_i32 s{sT}, s{sT}, {SLOT}"]
        fill[2] += [f"s_add_u32 s{sDm}, s{sT}, s{sDmaL}", f"s_add_u32 s{sStg}, s{sStg}, {PIECE}"]
        if ITERS > 8:
            fill[3] += [f"s_cmp_eq_u32 s{sStg}, {8*PIECE}", f"s_cselect_b32 s{sStg}, 0, s{sStg}"]
    if t == 1:
        fill[6] += [f"s_add_u32 s{sT}, s{sI}, 1", f"s_and_b32 s{sT}, s{sT}, 3", f"s_mul_i32 s{sNxt}, s{sT}, {SLOT}"]
        fill[7] += [f"s_cmp_eq_u32 s{sI}, {ITERS-1}"]
    if t == 3:
        fill[6] += [f"s_add_u32 s{sI}, s{sI}, 1"]
    emit_m(M, fill)
def eseg(E, name):
    cm(name)
    el(jit())
    e("s_setprio 0")
    el(E[:E1])
    e("s_setprio 1")
    el(E[E1:])

out.append(".p2align 6")
L("L_loop")
mseg(0)
L("L_E0")
eseg(ex(SA[0]) + ex(SB[0]), "E(0)")
mseg(1)
L("L_E1")
eseg(ex(SA[1]) + ex(SB[1]), "E(1)")
e("s_cbranch_scc1 L_tail")
mseg(2)
eseg(ex(SA[0]) + ex(SB[0]), "E(2)")
mseg(3)
eseg(ex(SA[1]) + ex(SB[1]), "E(3)")
e("s_branch L_loop")
L(f"L_poll")
e(f"ds_read_b32 v{vFl}, v{vFr}")
e("s_waitcnt lgkmcnt(0)")
e(f"v_cmp_gt_u32 vcc, s{sExp}, v{vFl}")
e(f"s_cbranch_vccnz L_poll")
e(f"s_branch L_pollok")

L("L_tail")
cm("last two key tiles (30, 31): q tile A first, so that its partial sums can be handed over early")
e("s_setprio 3")
stamp("tail")
e("s_waitcnt lgkmcnt(0)")
kr = kread(KF[1], 3); v30 = vread(VF[0], 2); v31 = vread(VF[1], 3)
M = qk(SA[0], KF[0], QA) + pv(OA, VF[1], SA[1]) + pv(OB, VF[1], SB[1]) + qk(SA[1], KF[1], QA)
emit_m(M, [pad() + kr[0:2], kr[2:4], v30[0:2], v30[2:4], [], ["s_waitcnt lgkmcnt(4)"] + v31[0:2], v31[2:4], []])
stamp("t2")
eseg(ex(SA[0]) + ex(SA[1]), "E'(30)")
e("s_setprio 3")
stamp("t3")
e("s_waitcnt lgkmcnt(0)")
el(jit())
xw = [f"ds_write_b128 v{vX}, v[{OA+4*i}:{OA+4*i+3}] offset:{1024*i}" for i in range(4)]
M = pv(OA, VF[0], SA[0]) + pv(OA, VF[1], SA[1]) + qk(SB[0], KF[0], QB) + qk(SB[1], KF[1], QB)
WM = CFG.get("wm", "a")
addf = [f"ds_add_u32 v{vFw}, v{vProg}"]
if WM == "a":
    emit_m(M, [[], [], [], [], ["s_nop 7", "s_nop 1"], xw[0:1], xw[1:3], xw[3:4] + addf + [f"s_add_u32 s{sExp}, s{sExp}, 1"]])
    xw2 = []
elif WM == "b":
    emit_m(M, [[], [], [], [], ["s_nop 7", "s_nop 1"], xw[0:2], xw[2:4] + addf, [f"s_add_u32 s{sExp}, s{sExp}, 1", "s_nop 1"]])
    xw2 = []
elif WM == "c":
    emit_m(M, [[], [], [], [], ["s_nop 7", "s_nop 1"], xw[0:1], xw[1:2], xw[2:3] + [f"s_add_u32 s{sExp}, s{sExp}, 1", "s_nop 1"]])
    xw2 = xw[3:4] + addf
R = SA[0]; P0 = SA[1]
def xreads():
    e(f"ds_read_b32 v{vFl}, v{vFp}")
    for i in (3, 0, 1, 2):
        e(f"ds_read_b128 v[{R+4*i}:{R+4*i+3}], v{vXr} offset:{1024*i}")
E = ex(SB[0]) + ex(SB[1])
PB = pv(OB, VF[0], SB[0]) + pv(OB, VF[1], SB[1])
stamp("t4")
e(f"s_mov_b32 s{sT+1}, 0x71800000")
e(f"s_mov_b32 s{sSo}, 0x207")
e(f"s_cmp_eq_u32 s{sHalf}, 0")
e("s_cbranch_scc0 L_lastY")
eseg(E, "E'(31), waves 0-3")
stamp("t0")
e("s_setprio 3")
e(PB[0]); el(xw2); e(PB[1]); e(PB[2]); e(PB[3])
e("s_branch L_xch_spin")
L("L_lastY")
el(jit())
cm("E'(31), waves 4-7")
if CFG["xr"] == "0": xreads()
el(pad())
e("s_setprio 0")
for i, s in enumerate(E):
    if i == E1: e(f"s_setprio {CFG['pe']}")
    if i == 10:
        e(PB[0]); el(xw2)
    if i == 18:
        e(PB[1])
        if 0 < int(CFG["xr"]) < 32: xreads()
    if i == 27: e(PB[2])
    e(s)
stamp("t0")
e("s_nop 0")
el(pad("s_nop 0"))
e(PB[3])
e(f"s_setprio {CFG['py']}")
if int(CFG["xr"]) >= 32: xreads()
e("s_waitcnt lgkmcnt(4)")
e(f"v_cmp_gt_u32 vcc, s{sExp}, v{vFl}")
e("s_cbranch_vccnz L_xch_spin")
e("s_nop 7")
L("L_xch_ok")
el(jit())
stamp("xok")
e(f"s_waitcnt lgkmcnt(3)")
def padd(r): e(f"v_pk_add_f32 v[{OB+r}:{OB+r+1}], v[{OB+r}:{OB+r+1}], v[{R+r}:{R+r+1}]")
padd(12)
padd(14)
cm("1/l (valid in lanes 32..63) -> all lanes")
e(f"v_rcp_f32 v{vT}, v{OB+12}")
e(f"s_waitcnt lgkmcnt(2)")
padd(0)
e(f"v_mov_b32 v{vT+4}, v{vT}")
padd(2)
e(f"s_waitcnt lgkmcnt(1)")
el(pad())
padd(4)
e(f"v_permlane32_swap_b32 v{vT}, v{vT+4}")
padd(6)
e(f"s_waitcnt lgkmcnt(0)")
padd(8)
padd(10)
cm("safety check of the unshifted exponentials, part 1: l in [1, 2^100]")
e(f"v_cmp_nle_f32 vcc, 1.0, v{OB+12}")
e(f"v_cmp_nge_f32 s[{sT+2}:{sT+3}], s{sT+1}, v{OB+12}")
L("L_fin")
stamp("fin")
def pmul(r): e(f"v_pk_mul_f32 v[{OB+r}:{OB+r+1}], v[{OB+r}:{OB+r+1}], v[{vT+4}:{vT+5}] op_sel_hi:[1,0]")
if CFG.get("w128"):
    for r in range(8, 16, 2): pmul(r)
    for r in range(8, 16, 2): e(f"v_cvt_pk_bf16_f32 v{P0+r//2}, v{OB+r}, v{OB+r+1}")
    cm("upper lanes spill 8 junk bytes into the next row; the second write (in order) covers them")
    e(f"ds_write_b128 v{vOw}, v[{P0+4}:{P0+7}] offset:16")
    for r in range(0, 8, 2): pmul(r)
    for r in range(0, 8, 2): e(f"v_cvt_pk_bf16_f32 v{P0+r//2}, v{OB+r}, v{OB+r+1}")
    e(f"ds_write_b128 v{vOw}, v[{P0}:{P0+3}]")
else:
    for r in range(0, 8, 2): pmul(r)
    for r in range(0, 8, 2): e(f"v_cvt_pk_bf16_f32 v{P0+r//2}, v{OB+r}, v{OB+r+1}")
    e(f"ds_write_b64 v{vOw}, v[{P0}:{P0+1}]")
    e(f"ds_write_b64 v{vOw}, v[{P0+2}:{P0+3}] offset:8")
    el(pad())
    for r in range(8, 16, 2): pmul(r)
    for r in range(8, 16, 2): e(f"v_cvt_pk_bf16_f32 v{P0+r//2}, v{OB+r}, v{OB+r+1}")
    e(f"ds_write_b64 v{vOw}, v[{P0+4}:{P0+5}] offset:16")
    e("s_mov_b32 exec_hi, 0")
    e(f"ds_write_b64 v{vOw}, v[{P0+6}:{P0+7}] offset:24")
    e("s_mov_b32 exec_hi, -1")
e(f"ds_read_b128 v[{P0+8}:{P0+11}], v{vXr}")
e(f"ds_read_b128 v[{P0+12}:{P0+15}], v{vXr} offset:1024")
stamp("stg")
e("s_setprio 0")
el(pad())
cm("part 2: every output finite")
e(f"s_or_b64 vcc, vcc, s[{sT+2}:{sT+3}]")
e(f"v_pk_add_f32 v[{vT+2}:{vT+3}], v[{OB}:{OB+1}], v[{OB+2}:{OB+3}]")
e(f"v_pk_add_f32 v[{vT+6}:{vT+7}], v[{OB+4}:{OB+5}], v[{OB+6}:{OB+7}]")
e(f"v_pk_add_f32 v[{R}:{R+1}], v[{OB+8}:{OB+9}], v[{OB+10}:{OB+11}]")
e(f"v_pk_add_f32 v[{R+2}:{R+3}], v[{OB+12}:{OB+13}], v[{OB+14}:{OB+15}]")
e(f"v_pk_add_f32 v[{vT+2}:{vT+3}], v[{vT+2}:{vT+3}], v[{vT+6}:{vT+7}]")
e(f"v_pk_add_f32 v[{R}:{R+1}], v[{R}:{R+1}], v[{R+2}:{R+3}]")
e(f"s_mov_b32 vcc_lo, 0")
e(f"v_pk_add_f32 v[{vT+2}:{vT+3}], v[{vT+2}:{vT+3}], v[{R}:{R+1}]")
e(f"s_and_b64 vcc, vcc, s[{sFast}:{sFast+1}]")
e(f"v_add_f32 v{vT+2}, v{vT+2}, v{vT+3}")
e(f"v_cmp_class_f32 s[{sT+4}:{sT+5}], v{vT+2}, s{sSo}")
el(pad("s_nop 0"))
e(f"s_and_b64 s[{sT+4}:{sT+5}], s[{sT+4}:{sT+5}], s[{sFast}:{sFast+1}]")
e(f"s_or_b64 vcc, vcc, s[{sT+4}:{sT+5}]")
e("s_cbranch_vccnz L_slow")
e("s_waitcnt lgkmcnt(1)")
e(f"buffer_store_dwordx4 v[{P0+8}:{P0+11}], v{vOl}, s[{rO}:{rO+3}], s{sQrow} offen {ST}")
e("s_mov_b32 exec_hi, 0xffff")
e("s_waitcnt lgkmcnt(0)")
e(f"buffer_store_dwordx4 v[{P0+12}:{P0+15}], v{vOl}, s[{rO}:{rO+3}], s{sQrow} offen offset:1024 {ST}")
if CFG.get("reveal"):
    e("s_memtime s[92:93]")
    e("s_waitcnt lgkmcnt(0)")
    e(f"s_and_b32 s94, s2, {int(CFG.get('rmask', 255))}")
    e(f"s_cmp_eq_u32 s94, {int(CFG.get('rwg', 133))}")
    e("s_cbranch_scc0 L_end")
    if CFG["reveal"] == "end":
        e(f"s_sub_u32 s94, s92, s{sStamp}")
        e(f"s_sub_u32 s94, s94, {int(CFG.get('roff', 24000))}")
        e(f"s_max_i32 s94, s94, 0")
    else:
        e(f"s_sub_u32 s94, s{sStamp+2}, s{sStamp}")
    e("s_lshl_b32 s94, s94, 4")
    L("L_rev")
    e("s_memtime s[96:97]")
    e("s_waitcnt lgkmcnt(0)")
    e("s_sub_u32 s96, s96, s92")
    e("s_cmp_lt_u32 s96, s94")
    e("s_cbranch_scc1 L_rev")
    e("s_branch L_end")
if CFG["stamp"]:
    stamp("st")
    e("s_waitcnt vmcnt(0)")
    stamp("end")
    e("s_memrealtime s[74:75]")
    e("s_load_dwordx2 s[76:77], s[0:1], 40")
    e("s_waitcnt lgkmcnt(0)")
    e("s_mov_b32 s78, 0x100000")
    e("s_mov_b32 s79, 0x00020000")
    e("s_mov_b64 exec, 1")
    e(f"s_lshl_b32 s82, s2, 3")
    e(f"s_add_u32 s82, s82, s{sW}")
    e(f"s_mul_i32 s82, s82, 48")
    e("v_mov_b32 v3, s82")
    for k in range(8):
        e(f"v_mov_b32 v{4+k}, s{sStamp+2*k}")
    e("v_mov_b32 v12, s72")
    e("v_mov_b32 v13, s74")
    e("s_getreg_b32 s80, hwreg(HW_REG_XCC_ID)")
    e("v_mov_b32 v14, s80")
    e("buffer_store_dwordx4 v[4:7], v3, s[76:79], 0 offen")
    e("buffer_store_dwordx4 v[8:11], v3, s[76:79], 0 offen offset:16")
    e("buffer_store_dwordx4 v[12:15], v3, s[76:79], 0 offen offset:32")
L("L_end")
e("s_endpgm")
cm("wait for the partner's partial sums")
L("L_xch_spin")
e(f"ds_read_b32 v{vFl}, v{vFp}")
e("s_waitcnt lgkmcnt(0)")
e(f"v_cmp_gt_u32 vcc, s{sExp}, v{vFl}")
e("s_cbranch_vccnz L_xch_spin")
xreads()
e(f"s_setprio {CFG['px']}")
e("s_nop 0")
el(pad("s_nop 0"))
e("s_branch L_xch_ok")

cm("fallback: exact online-max softmax for this wave's 32 queries (tile B), all 2048 keys")
L("L_slow")
e("s_waitcnt lgkmcnt(0)")
e(f"s_mov_b64 s[{sFast}:{sFast+1}], 0")
QR = QA; S = SA[0]; vM = vT; vMn = vT + 1; vAl = vT + 2; vKo = vT + 4; vVo = vT + 5; vVa = vT + 6
e(f"s_mov_b32 s{rK+2}, {BUFSZ}")
e(f"s_mov_b32 s{rK+3}, 0x00020000")
e(f"s_mov_b32 s{rV+2}, {BUFSZ}")
e(f"s_mov_b32 s{rV+3}, 0x00020000")
e(f"buffer_load_dwordx4 v[{QR}:{QR+3}], v{vQoff}, s[{rQ}:{rQ+3}], s{sQrow} offen")
e(f"buffer_load_dwordx4 v[{QR+4}:{QR+7}], v{vQoff}, s[{rQ}:{rQ+3}], s{sQrow} offen offset:16")
e(f"v_add_u32 v{vKo}, s{sHead}, v{vQoff}")
e(f"v_add_u32 v{vVo}, s{sHead}, v{vOl}")
e(f"v_add_u32 v{vVa}, s{sXr}, v{vSl0}")
e(f"v_cmp_eq_u32 vcc, 1, v{vOne}")
e(f"s_mov_b32 m0, s{sXr}")
e(f"v_mov_b32 v{vM}, 0xff7fffff")
e(f"v_cndmask_b32 v{vVa}, v{vSl1}, v{vVa}, vcc")
for r in range(16): e(f"v_mov_b32 v{OB+r}, 0")
e(f"v_cmp_eq_u32 vcc, 0, v{vH}")
e(f"s_mov_b32 s{sStg}, 0")
e("s_waitcnt vmcnt(0)")
e(f"v_cndmask_b32 v{QR}, 0, v{QR}, vcc")
e(f"v_cndmask_b32 v{QR+1}, 0, v{QR+1}, vcc")
L("L_slow_loop")
for i in range(4):
    e(f"buffer_load_dwordx2 v[{KF[0]+2*i}:{KF[0]+2*i+1}], v{vKo}, s[{rK}:{rK+3}], s{sStg} offen offset:{8*i}")
e(f"buffer_load_dwordx4 v{vVo}, s[{rV}:{rV+3}], s{sStg} offen lds")
e(f"buffer_load_dwordx4 v{vVo}, s[{rV}:{rV+3}], s{sStg} offen offset:1024 lds")
e("s_waitcnt vmcnt(0)")
el(vread(VF[0], 0, vVa))
q = qk(S, KF[0], QR)
e(q[0]); e(q[1])
e("s_nop 15")
e(f"v_max3_f32 v{vMn}, v{S}, v{S+1}, v{vM}")
for r in range(2, 16, 2):
    e(f"v_max3_f32 v{vMn}, v{S+r}, v{S+r+1}, v{vMn}")
e(f"v_mov_b32 v{vAl}, v{vMn}")
e("s_nop 1")
e(f"v_permlane32_swap_b32 v{vMn}, v{vAl}")
e("s_nop 1")
e(f"v_max_f32 v{vMn}, v{vMn}, v{vAl}")
e(f"v_sub_f32 v{vAl}, v{vM}, v{vMn}")
e(f"v_mul_f32 v{vAl}, s{sC}, v{vAl}")
e(f"v_exp_f32 v{vAl}, v{vAl}")
e(f"v_mov_b32 v{vM}, v{vMn}")
for r in range(16):
    e(f"v_sub_f32 v{S+r}, v{S+r}, v{vM}")
    e(f"v_mul_f32 v{S+r}, s{sC}, v{S+r}")
    e(f"v_exp_f32 v{S+r}, v{S+r}")
for r in range(16):
    e(f"v_mul_f32 v{OB+r}, v{vAl}, v{OB+r}")
e("s_waitcnt lgkmcnt(0)")
e("s_nop 1")
P = pv(OB, VF[0], S)
e(P[0]); e(P[1])
e("s_nop 15")
e(f"s_add_u32 s{sStg}, s{sStg}, 1792")
e(f"s_cmp_lt_u32 s{sStg}, {HEADB}")
e("s_cbranch_scc1 L_slow_loop")
e(f"v_rcp_f32 v{vT}, v{OB+12}")
e("s_nop 0")
e(f"v_mov_b32 v{vT+4}, v{vT}")
e("s_nop 1")
e(f"v_permlane32_swap_b32 v{vT}, v{vT+4}")
e("s_nop 1")
e("s_branch L_fin")

out.append('.section .rodata,"a"')
out.append(".p2align 6")
out.append(f".amdhsa_kernel {NAME}_kernel")
out.append(f"  .amdhsa_next_free_vgpr {NVGPR}")
out.append("  .amdhsa_next_free_sgpr 102")
out.append(f"  .amdhsa_accum_offset {NVGPR}")
out.append("  .amdhsa_group_segment_fixed_size 0")
out.append("  .amdhsa_kernarg_size 48")
out.append("  .amdhsa_user_sgpr_count 2")
out.append("  .amdhsa_user_sgpr_kernarg_segment_ptr 1")
out.append("  .amdhsa_system_sgpr_workgroup_id_x 1")
out.append(".end_amdhsa_kernel")
open(sys.argv[1], "w").write("\n".join(out) + "\n")
```

```python
import sys, struct, math
NAME = "standalone__fused_io_aware_attn__prompt"
HEADER = open("cdna_kernels/%s.s.ref" % NAME).read().split("; Override launch")[0]

CFG = dict(stamp=False, e1=7, st="sc1", df="nt", qf="nt", xr="0", d1=0, d2=1, px=3, py=1, pe=2, cpf=3, v1=1, v2=2, xpre=True, kfirst=True)
for a in sys.argv[2:]:
    k, v = a.split("=")
    CFG[k] = {"True": True, "False": False, "None": None}.get(v, v)
ITERS = int(CFG.get("iters", 8))
E1 = int(CFG["e1"])
DF = CFG["df"].replace("+", " "); QF = CFG["qf"].replace("+", " "); ST = CFG["st"].replace("+", " ")

BUFSZ = 3670016
HEADB = 114688
PIECE = 7168
SLOT = 4 * PIECE
NSLOT = 4
ONES = NSLOT * SLOT
XCH = ONES + 8192
FLAG = XCH + 8 * 4096
LDS = FLAG + 2048
c = (28 ** -0.5) * math.log2(math.e)
CBITS = struct.unpack("<I", struct.pack("<f", c))[0]

vFp = 1; vOw = 2; vOl = 3
SA = [4, 20]; SB = [36, 52]; OA = 68; OB = 84
QA = 100; QB = 108
KF = [116, 124]; VF = [132, 140]
vK = 148; vV = 149; vK0 = 150; vV0 = 151; vOne = 152; vIdx = 153; vDma = 154
vLane = 155; vH = 156; vQoff = 157; vX = 158; vQl = 159; vXr = 160; vFw = 161; vFr = 162; vProg = 163; vFl = 164
vSl0 = 165; vSl1 = 166
vT = 168
NVGPR = 176
sQ = 4; sKp = 6; sVp = 8; sO = 10
rQ = 12; rD = 16; rO = 20; rK = 24; rV = 28
sW = 32; sHalf = 33; sHead = 34; sI = 35; sLim3 = 36; sNxt = 37; sDm = 38; sDmaL = 39; sStg = 40; sOff3 = 41
sC = 42
sT = 44
sXr = 50; sSo = 51; sQrow = 52; sQA = 53; sExp = 88; sFast = 90; sM0 = 89
sStamp = 56

out = []
def e(s): out.append(s if s.endswith(":") else "    " + s)
def el(l):
    for s in l: e(s)
def L(s): out.append(s + ":")
def cm(s): out.append("    ; " + s)

def qk(S, Kf, Q):
    return [f"v_mfma_f32_32x32x16_bf16 v[{S}:{S+15}], v[{Kf}:{Kf+3}], v[{Q}:{Q+3}], 0",
            f"v_mfma_f32_32x32x16_bf16 v[{S}:{S+15}], v[{Kf+4}:{Kf+7}], v[{Q+4}:{Q+7}], v[{S}:{S+15}]"]
def pv(O, Vf, S):
    return [f"v_smfmac_f32_32x32x32_bf16 v[{O}:{O+15}], v[{Vf}:{Vf+3}], v[{S}:{S+7}], v{vIdx}",
            f"v_smfmac_f32_32x32x32_bf16 v[{O}:{O+15}], v[{Vf+4}:{Vf+7}], v[{S+8}:{S+15}], v{vIdx}"]
def ex(S): return [f"v_exp_f32 v{S+i}, v{S+i}" for i in range(16)]
def kread(dst, tile, addr=vK): return [f"ds_read_b64 v[{dst+2*i}:{dst+2*i+1}], v{addr} offset:{tile*1792+8*i}" for i in range(4)]
def vread(dst, tile, addr=vV):
    return [f"ds_read_b64_tr_b16 v[{dst+2*i}:{dst+2*i+1}], v{addr} offset:{tile*1792+(i>>1)*896+(i&1)*224}" for i in range(4)]
def dma(t):
    off = ["0", "2048", "4096", f"s{sOff3}"][t]
    return [f"s_add_u32 m0, s{sDm}, {off}", f"s_add_u32 s{sSo}, s{sStg}, {off}",
            f"buffer_load_dwordx4 v{vDma}, s[{rD}:{rD+3}], s{sSo} offen {DF} lds"]
def dmal(t):
    lim = f"s{sLim3}" if t == 3 else str(ITERS - 2)
    return [f"s_cmp_lt_u32 s{sI}, {lim}", f"s_cbranch_scc0 L_nodma{t}"] + dma(t) + [f"L_nodma{t}:"]
def setstage(st): return [f"s_add_u32 s{sDm}, s{sDmaL}, {st*SLOT}", f"s_mov_b32 s{sStg}, {st*PIECE}"]
NEXT5 = setstage(1) + dma(0) + dma(1) + dma(2) + dma(3) + setstage(2) + dma(0)
def emit_m(M, fill):
    for g in range(len(M)):
        e(M[g]); el(fill[g])
nj = [0]
def jit():
    if not CFG.get("jit"): return []
    k = nj[0]; nj[0] += 1
    return ["s_cselect_b32 s99, 1, 0", "s_memtime s[96:97]", "s_waitcnt lgkmcnt(0)", f"s_mul_i32 s96, s96, {2654435761 & 0x7fffffff}", f"s_add_u32 s96, s96, s{sW}",
            "s_mul_i32 s96, s96, 40503", "s_lshr_b32 s96, s96, 26", "s_mul_i32 s97, s96, s96", "s_lshr_b32 s96, s97, 6", f"L_jit{k}:", "s_sleep 1", "s_sub_u32 s96, s96, 1",
            "s_cmp_gt_i32 s96, 0", f"s_cbranch_scc1 L_jit{k}", "s_cmp_eq_u32 s99, 1"]
IPF = int(CFG.get("ipf", 0))
npad = [0]
def pad(alt=None):
    if IPF and npad[0] < 8:
        k = npad[0]; npad[0] += 1
        return [f"L_pad{k}:", "s_cbranch_execz L_padret"]
    return [alt] if alt else []
nstamp = [0]
STS = CFG.get("sts", "start,q,bar,bar2,tail,t0,st,end").split(",")
def stamp(name):
    if CFG["stamp"] and name in STS:
        k = STS.index(name)
        e(f"s_memtime s[{sStamp+2*k}:{sStamp+2*k+1}]")

def eseg(E, name):
    cm(name)
    el(jit())
    e("s_setprio 0")
    el(E[:E1])
    e("s_setprio 1")
    el(E[E1:])

out.append(HEADER.rstrip())
out.append(f"; @launch grid=(256,1,1) block=(512,1,1) lds={LDS}")
out.append('.amdgcn_target "amdgcn-amd-amdhsa--gfx950"')
out.append(".text")
out.append(f".globl {NAME}_kernel")
out.append(".p2align 8")
out.append(f".type {NAME}_kernel,@function")
L(f"{NAME}_kernel")
stamp("start")
e(f"s_load_dwordx2 s[{rQ}:{rQ+1}], s[0:1], 0")
e(f"s_load_dwordx2 s[{rK}:{rK+1}], s[0:1], 8")
e(f"s_load_dwordx2 s[{rV}:{rV+1}], s[0:1], 16")
e(f"s_load_dwordx2 s[{rO}:{rO+1}], s[0:1], 24")
e("s_cmp_ge_u32 s2, 256")
e("s_cbranch_scc1 L_end")
if CFG["stamp"]:
    e(f"s_memrealtime s[72:73]")
CPF = int(CFG.get("cpf", 0))
if CPF:
    cm("one wave touches the kernel's own code lines (128 B apart) so that later instruction fetches hit in L2")
    e(f"v_subrev_u32 v{vT+2}, {CPF*64}, v0")
    e(f"s_getpc_b64 s[{sT}:{sT+1}]")
    L("L_pc")
    e(f"v_cmp_gt_u32 vcc, {int(CFG.get('ncpf', 40))}, v{vT+2}")
    e(f"s_and_saveexec_b64 s[{sT+2}:{sT+3}], vcc")
    e("s_cbranch_execz L_nocpf")
    e(f"v_lshlrev_b32 v{vT+2}, 7, v{vT+2}")
    e(f"v_mov_b32 v{vT+3}, s{sT+1}")
    e(f"v_add_co_u32 v{vT+2}, vcc, s{sT}, v{vT+2}")
    e("s_nop 1")
    e(f"v_addc_co_u32 v{vT+3}, vcc, 0, v{vT+3}, vcc")
    e(f"global_load_dword v167, v[{vT+2}:{vT+3}], off {CFG.get('cf','')}")
    L("L_nocpf")
    e(f"s_mov_b64 exec, s[{sT+2}:{sT+3}]")
cm("head = (b&7)*4 + (b>>6) ; q block = (b>>3)&7 ; wave w owns q tile A = w and B = w^4 of the block")
e(f"v_lshrrev_b32 v{vT}, 1, v0")
e(f"s_and_b32 s{sT}, s2, 7")
e(f"v_bfi_b32 v{vT}, 31, v0, v{vT}")
e(f"s_mul_i32 s{sT}, s{sT}, {4*HEADB}")
e(f"v_bfe_u32 v{vH}, v0, 5, 1")
e(f"s_and_b32 s{sT+1}, s2, 0xf8")
e(f"v_mul_u32_u24 v{vT}, 56, v{vT}")
e(f"s_mul_i32 s{sT+1}, s{sT+1}, 1792")
e(f"v_mad_u32_u24 v{vQl}, v{vH}, 24, v{vT}")
e(f"s_add_u32 s{sQA}, s{sT}, s{sT+1}")
e(f"v_lshrrev_b32 v1, 6, v0")
e(f"s_mov_b32 s{rQ+2}, {BUFSZ}")
e(f"s_mov_b32 s{rQ+3}, 0x00020000")
e(f"v_readfirstlane_b32 s{sW}, v1")
e(f"v_and_b32 v{vLane}, 63, v0")
e(f"s_lshr_b32 s{sT+1}, s2, 6")
e(f"s_mul_i32 s{sT+1}, s{sT+1}, {HEADB}")
e(f"s_add_u32 s{sHead}, s{sT}, s{sT+1}")
e(f"v_lshlrev_b32 v{vOl}, 4, v{vLane}")
cm("DMA lane offset: head + half*57344 + (w&1)*1024 + lane*16")
e(f"s_lshr_b32 s{sHalf}, s{sW}, 2")
e(f"s_and_b32 s{sT+4}, s{sW}, 1")
e(f"s_mul_i32 s{sT+3}, s{sHalf}, 57344")
e(f"s_lshl_b32 s{sT+4}, s{sT+4}, 10")
e(f"s_add_u32 s{sT+3}, s{sT+3}, s{sHead}")
e(f"s_and_b32 s{sT+5}, s{sW}, 3")
e(f"s_add_u32 s{sT+3}, s{sT+3}, s{sT+4}")
e(f"s_mul_i32 s{sM0}, s{sHalf}, {2*PIECE}")
e(f"v_add_u32 v{vDma}, s{sT+3}, v{vOl}")
cm("stage 0: wave g of a group loads block g of K and V, later block min(4+g,6)")
e(f"s_lshl_b32 s{sT+1}, s{sT+5}, 10")
e(f"s_add_u32 m0, s{sM0}, s{sT+1}")
e(f"s_sub_u32 s{sSo}, s{sT+1}, s{sT+4}")
e(f"s_mov_b32 s{rK+2}, {BUFSZ}")
e(f"s_mov_b32 s{rK+3}, 0x00020000")
e(f"s_waitcnt lgkmcnt(0)")
stamp("karg")
KF1 = CFG.get("kfirst")
if KF1: e(f"buffer_load_dwordx4 v{vDma}, s[{rK}:{rK+3}], s{sSo} offen {DF} lds")
e(f"buffer_load_dwordx4 v[{QA}:{QA+3}], v{vQl}, s[{rQ}:{rQ+3}], s{sQA} offen {QF}")
e(f"buffer_load_dwordx4 v[{QA+4}:{QA+7}], v{vQl}, s[{rQ}:{rQ+3}], s{sQA} offen offset:16 {QF}")
if not KF1: e(f"buffer_load_dwordx4 v{vDma}, s[{rK}:{rK+3}], s{sSo} offen {DF} lds")
e(f"s_mov_b32 s{rV+2}, {BUFSZ}")
e(f"s_mov_b32 s{rV+3}, 0x00020000")
def load_va():
    e(f"s_add_u32 m0, m0, {PIECE}")
    e("s_nop 0")
    e(f"buffer_load_dwordx4 v{vDma}, s[{rV}:{rV+3}], s{sSo} offen {DF} lds")
def load_b():
    e(f"s_and_b32 s{sT}, s{sW}, 3")
    e(f"s_add_u32 s{sT}, s{sT}, 4")
    e(f"s_min_u32 s{sT}, s{sT}, 6")
    e(f"s_lshl_b32 s{sT}, s{sT}, 10")
    e(f"s_add_u32 m0, s{sM0}, s{sT}")
    e(f"s_sub_u32 s{sSo}, s{sT}, s{sT+4}")
    e(f"buffer_load_dwordx4 v{vDma}, s[{rK}:{rK+3}], s{sSo} offen {DF} lds")
    e(f"s_add_u32 m0, m0, {PIECE}")
    e("s_nop 0")
    e(f"buffer_load_dwordx4 v{vDma}, s[{rV}:{rV+3}], s{sSo} offen {DF} lds")
V1 = int(CFG["v1"]); V2 = int(CFG["v2"])
cm("ones region: 512 threads x 16 B of (1,0,0,0) ; progress flags = 0")
e(f"v_mov_b32 v{vT+4}, 0x3f80")
e(f"v_mov_b32 v{vT+5}, 0")
e(f"v_mov_b32 v{vT+6}, 0x3f80")
e(f"v_mov_b32 v{vT+7}, 0")
e(f"v_lshlrev_b32 v{vT+1}, 4, v0")
e(f"v_add_u32 v{vT+1}, {ONES}, v{vT+1}")
e(f"ds_write_b128 v{vT+1}, v[{vT+4}:{vT+7}]")
e(f"v_lshlrev_b32 v{vFw}, 2, v0")
e(f"v_add_u32 v{vFw}, {FLAG}, v{vFw}")
e(f"ds_write_b32 v{vFw}, v{vT+5}")
cm("in-loop loader role: waves 0,1 / 4,5 K, waves 2,3 / 6,7 V ; LDS piece offset (w>>1)*7168 + (w&1)*1024")
e(f"s_bitcmp1_b32 s{sW}, 1")
e(f"s_cselect_b32 s{rD}, s{rV}, s{rK}")
e(f"s_cselect_b32 s{rD+1}, s{rV+1}, s{rK+1}")
e(f"s_mov_b32 s{rD+2}, {BUFSZ}")
e(f"s_mov_b32 s{rD+3}, 0x00020000")
e(f"s_lshr_b32 s{sT+5}, s{sW}, 1")
e(f"s_mul_i32 s{sDmaL}, s{sT+5}, {PIECE}")
e(f"s_add_u32 s{sDmaL}, s{sDmaL}, s{sT+4}")
e(f"s_sub_u32 s{sOff3}, 6144, s{sT+4}")
cm("exchange region: mine s(sT), partner's sXr ; tile B rows")
e(f"s_lshl_b32 s{sT}, s{sW}, 12")
e(f"s_add_u32 s{sT}, s{sT}, {XCH}")
e(f"s_xor_b32 s{sT+1}, s{sW}, 4")
e(f"s_mul_i32 s{sT+2}, s{sT+1}, 1792")
e(f"s_add_u32 s{sQrow}, s{sQA}, s{sT+2}")
e(f"s_lshl_b32 s{sT+1}, s{sT+1}, 12")
e(f"s_add_u32 s{sXr}, s{sT+1}, {XCH}")
e(f"v_add_u32 v{vX}, s{sT}, v{vOl}")
e(f"v_add_u32 v{vXr}, s{sXr}, v{vOl}")
cm("flags and ones are initialised; every wave's q and first K loads are queued ahead of the rest")
e("s_waitcnt lgkmcnt(0)")
e("s_barrier")
stamp("b0")
if V1 == 0: load_va()
cm("vQoff = rho*56 + 24h")
e(f"s_mul_i32 s{sT}, s{sW}, 1792")
e(f"v_subrev_u32 v{vQoff}, s{sT}, v{vQl}")
el(jit())
e(f"s_mov_b32 s{rO+2}, {BUFSZ}")
e(f"s_mov_b32 s{rO+3}, 0x00020000")
e(f"s_mov_b32 s{sC}, {hex(CBITS)}")
e(f"s_mov_b32 s{sC+1}, {hex(CBITS)}")
e(f"v_and_b32 v{vT+2}, 3, v{vLane}")
e(f"v_lshlrev_b32 v{vT+2}, 8, v{vT+2}")
e(f"v_lshl_add_u32 v{vT+2}, v{vLane}, 2, v{vT+2}")
e(f"s_lshl_b32 s{sT}, s{sHalf}, 10")
e(f"s_add_u32 s{sT}, s{sT}, {FLAG}")
e(f"v_add_u32 v{vFr}, s{sT}, v{vT+2}")
e(f"v_xor_b32 v{vFp}, 1024, v{vFw}")
e(f"v_mov_b32 v{vProg}, 1")
cm("K read base")
e(f"v_add_u32 v{vK0}, s{sM0}, v{vQoff}")
cm("V read base: half*14336 + 7168 + (8h+r)*56 + dchunk*8")
e(f"v_bfe_u32 v{vT+1}, v{vLane}, 2, 2")
e(f"v_lshl_add_u32 v{vT+1}, v{vH}, 3, v{vT+1}")
e(f"v_mul_u32_u24 v{vT+1}, 56, v{vT+1}")
e(f"v_and_b32 v{vT+2}, 1, v{vLane}")
e(f"v_lshlrev_b32 v{vT+2}, 2, v{vT+2}")
e(f"v_bfe_u32 v{vT+3}, v{vLane}, 4, 1")
e(f"v_lshl_add_u32 v{vT+2}, v{vT+3}, 1, v{vT+2}")
e(f"v_bfe_u32 v{vT+3}, v{vLane}, 1, 1")
e(f"v_add_u32 v{vT+2}, v{vT+2}, v{vT+3}")
e(f"v_lshl_add_u32 v{vSl0}, v{vT+2}, 3, v{vT+1}")
e(f"s_add_u32 s{sT}, s{sM0}, {PIECE}")
e(f"v_add_u32 v{vV0}, s{sT}, v{vSl0}")
e(f"v_cmp_ne_u32 vcc, 7, v{vT+2}")
e(f"v_mul_u32_u24 v{vSl1}, 64, v{vH}")
e(f"v_sub_u32 v{vSl1}, {ONES+224}, v{vSl1}")
e(f"v_mov_b32 v{vK}, v{vK0}")
e(f"v_cndmask_b32 v{vV0}, v{vSl1}, v{vV0}, vcc")
e(f"v_cndmask_b32 v{vOne}, 0, 1, vcc")
e(f"v_mov_b32 v{vV}, v{vV0}")
e(f"v_mov_b32 v{vIdx}, 0xdddddddd")
if V1 == 1: load_va()
if V2 == 1: load_b()
for r in range(OA, OA+32):
    e(f"v_mov_b32 v{r}, 0")
cm("output staging address: partner region + ql*56 + 32h")
e(f"v_lshl_add_u32 v{vOw}, v{vH}, 3, v{vQoff}")
e(f"v_add_u32 v{vOw}, s{sXr}, v{vOw}")
cm("per-lane scale for the duplicated dims (zero for h=1)")
e(f"v_cmp_eq_u32 vcc, 0, v{vH}")
e(f"v_mov_b32 v{vT}, s{sC}")
e(f"s_mov_b32 s{sI}, 0")
e(f"v_cndmask_b32 v{vT}, 0, v{vT}, vcc")
e(f"s_mov_b32 s{sExp}, 1")
e(f"s_mov_b64 s[{sFast}:{sFast+1}], -1")
e(f"s_bitcmp1_b32 s{sW}, 0")
e(f"s_cselect_b32 s{sLim3}, 0, {ITERS-2}")
e(f"s_mov_b32 s{sNxt}, {SLOT}")
if V2 == 2: load_b()
e("s_setprio 3")
if KF1:
    e(f"s_waitcnt vmcnt(5)")
    e(f"ds_add_u32 v{vFw}, v{vProg}")
    e(f"s_waitcnt vmcnt(3)")
else:
    e(f"s_waitcnt vmcnt(4)")
stamp("q")
if KF1:
    cm("speculative: flags first, then K(0), K(1); valid if the flags say so")
    e(f"ds_read_b32 v{vFl}, v{vFr}")
    el(kread(KF[0], 0) + kread(KF[1], 1))
cm("Q prep: bf16 -> f32, * scale*log2(e), -> bf16 (temporaries: the S buffers)")
TT = SA[0]
for hf in range(2):
    for i in range(4*hf, 4*hf+4):
        e(f"v_lshlrev_b32 v{TT+2*i}, 16, v{QA+i}")
        e(f"v_and_b32 v{TT+2*i+1}, 0xffff0000, v{QA+i}")
    for i in range(4*hf, 4*hf+4):
        if i < 2: e(f"v_pk_mul_f32 v[{TT+2*i}:{TT+2*i+1}], v[{TT+2*i}:{TT+2*i+1}], v[{vT}:{vT+1}] op_sel_hi:[1,0]")
        else: e(f"v_pk_mul_f32 v[{TT+2*i}:{TT+2*i+1}], v[{TT+2*i}:{TT+2*i+1}], s[{sC}:{sC+1}]")
    for i in range(4*hf, 4*hf+4):
        e(f"v_cvt_pk_bf16_f32 v{QA+i}, v{TT+2*i}, v{TT+2*i+1}")
    if hf == 0: e(f"ds_write_b128 v{vX}, v[{QA}:{QA+3}]")
stamp("prep")
el(jit())
cm("first two key tiles with q tile A only (q tile B comes from the partner wave)")
e(f"ds_write_b128 v{vX}, v[{QA+4}:{QA+7}] offset:1024")
if KF1:
    e("s_waitcnt lgkmcnt(10)")
    e(f"v_cmp_gt_u32 vcc, s{sExp}, v{vFl}")
    e("s_cbranch_vccz L_s1")
else:
    e("s_waitcnt vmcnt(3)")
    e(f"ds_add_u32 v{vFw}, v{vProg}")
L("L_s1_spin")
e(f"ds_read_b32 v{vFl}, v{vFr}")
e("s_waitcnt lgkmcnt(0)")
e(f"v_cmp_gt_u32 vcc, s{sExp}, v{vFl}")
e("s_cbranch_vccnz L_s1_spin")
el(kread(KF[0], 0) + kread(KF[1], 1))
L("L_s1")
e(f"s_waitcnt lgkmcnt(4)")
stamp("qk0")
q = qk(SA[0], KF[0], QA)
e(q[0]); e(q[1])
e(f"s_waitcnt lgkmcnt(0)")
q = qk(SA[1], KF[1], QA)
e(q[0])
e(f"s_cmp_eq_u32 s{sHalf}, 0")
e(q[1])
XPRE = CFG.get("xpre")
def after_b2(n=2):
    e(f"s_waitcnt vmcnt({n})")
    e("s_barrier")
    stamp("bar2")
    e(f"ds_read_b128 v[{QB}:{QB+3}], v{vXr}")
    e(f"ds_read_b128 v[{QB+4}:{QB+7}], v{vXr} offset:1024")
    el(vread(VF[0], 0) + vread(VF[1], 1))
e("s_cbranch_scc1 L_x0")
el(jit())
after_b2()
L("L_x0")
e("s_nop 5")
eseg(ex(SA[0]) + ex(SA[1]), "E'(0)")
e("s_setprio 3")
e("s_cbranch_scc0 L_y0")
if XPRE:
    el(setstage(1) + dma(0) + dma(1) + dma(2) + dma(3))
    after_b2(6)
else:
    after_b2()
L("L_y0")
el(jit())
cm("M'(1): q tile B against key tiles 0, 1 ; carries the loads of stage 1")
def ydma(k, pre=[]):
    if not XPRE: return pre + dma(k)
    return [f"s_cmp_eq_u32 s{sHalf}, 0", f"s_cbranch_scc1 L_yd{k}"] + pre + dma(k) + [f"L_yd{k}:"]
el(ydma(0, setstage(1)))
e("s_waitcnt lgkmcnt(8)")
M = qk(SB[0], KF[0], QB) + qk(SB[1], KF[1], QB) + pv(OA, VF[0], SA[0]) + pv(OA, VF[1], SA[1])
emit_m(M, [[], ydma(1), [], ydma(2) + ["s_waitcnt lgkmcnt(0)"], [], ydma(3), [],
           ["s_waitcnt vmcnt(4)", f"ds_add_u32 v{vFw}, v{vProg}", f"s_mov_b32 s{sExp}, 2"]])
eseg(ex(SB[0]) + ex(SB[1]), "E'(1)")
cm("M'(2)")
e("s_setprio 3")
el(jit())
e(f"ds_read_b32 v{vFl}, v{vFr}")
el(kread(KF[0], 2))
M = pv(OB, VF[0], SB[0]) + pv(OB, VF[1], SB[1]) + qk(SA[0], KF[0], QA) + qk(SB[0], KF[0], QB)
kr = kread(KF[1], 3); vr = vread(VF[0], 2)
emit_m(M, [setstage(2) + dma(0), ["s_waitcnt lgkmcnt(4)", f"v_cmp_gt_u32 vcc, s{sExp}, v{vFl}", "s_cbranch_vccnz L_s2_spin", "L_s2:", kr[0], kr[1]],
           [kr[2]] + dma(1), [kr[3], "s_waitcnt lgkmcnt(4)"], [vr[0]] + dma(2), [vr[1]], [vr[2]], [vr[3], "s_nop 4"]])
e("s_branch L_E2")
for lab in ("s2",):
    L(f"L_{lab}_spin")
    e(f"ds_read_b32 v{vFl}, v{vFr}")
    e("s_waitcnt lgkmcnt(0)")
    e(f"v_cmp_gt_u32 vcc, s{sExp}, v{vFl}")
    e(f"s_cbranch_vccnz L_{lab}_spin")
    if lab == "s2": el(kread(KF[0], 2))
    e(f"s_branch L_{lab}")

def mseg(t):
    p = t & 1
    M = qk(SA[p], KF[p], QA) + pv(OA, VF[1-p], SA[1-p]) + qk(SB[p], KF[p], QB) + pv(OB, VF[1-p], SB[1-p])
    kr = kread(KF[1-p], (t + 1) & 3); vr = vread(VF[p], t)
    fill = [[] for _ in range(8)]
    cm(f"M({t})")
    el(jit())
    e("s_setprio 3")
    if t == 0:
        e(f"v_mad_u32_u24 v{vV}, s{sNxt}, v{vOne}, v{vV0}")
    e("s_waitcnt lgkmcnt(0)")
    for i in range(4): fill[i] += [vr[i]]
    if t == 3:
        fill[0] = ["s_waitcnt vmcnt(3)", f"s_cmp_lt_u32 s{sI}, {ITERS-2}", "s_cbranch_scc1 L_w2", "s_waitcnt vmcnt(0)", "L_w2:",
                   f"ds_add_u32 v{vFw}, v{vProg}"] + fill[0]
        fill[1] += [f"s_add_u32 s{sExp}, s{sExp}, 1", f"v_add_u32 v{vK}, s{sNxt}, v{vK0}"]
        fill[2] += dmal(t)
        fill[3] += [f"ds_read_b32 v{vFl}, v{vFr}"]
        fill[5] += ["s_waitcnt lgkmcnt(0)", f"v_cmp_gt_u32 vcc, s{sExp}, v{vFl}", f"s_cbranch_vccnz L_poll", f"L_pollok:", kr[0]]
        fill[6] += [kr[1], kr[2]]
        fill[7] += [kr[3]]
    else:
        for i in range(4): fill[4+i] += [kr[i]]
        fill[5] += dmal(t)
    if t == 0:
        fill[1] += [f"s_add_u32 s{sT}, s{sI}, 2", f"s_and_b32 s{sT}, s{sT}, 3", f"s_mul_i32 s{sT}, s{sT}, {SLOT}"]
        fill[2] += [f"s_add_u32 s{sDm}, s{sT}, s{sDmaL}", f"s_add_u32 s{sStg}, s{sStg}, {PIECE}"]
        if ITERS > 8:
            fill[3] += [f"s_cmp_eq_u32 s{sStg}, {8*PIECE}", f"s_cselect_b32 s{sStg}, 0, s{sStg}"]
    if t == 1:
        fill[6] += [f"s_add_u32 s{sT}, s{sI}, 1", f"s_and_b32 s{sT}, s{sT}, 3", f"s_mul_i32 s{sNxt}, s{sT}, {SLOT}"]
        fill[7] += [f"s_cmp_eq_u32 s{sI}, {ITERS-1}"]
    if t == 3:
        fill[6] += [f"s_add_u32 s{sI}, s{sI}, 1"]
    emit_m(M, fill)
out.append(".p2align 6")
L("L_loop")
mseg(0)
eseg(ex(SA[0]) + ex(SB[0]), "E(0)")
mseg(1)
eseg(ex(SA[1]) + ex(SB[1]), "E(1)")
e("s_cbranch_scc1 L_tail")
mseg(2)
L("L_E2")
eseg(ex(SA[0]) + ex(SB[0]), "E(2)")
mseg(3)
eseg(ex(SA[1]) + ex(SB[1]), "E(3)")
e("s_branch L_loop")
L(f"L_poll")
e(f"ds_read_b32 v{vFl}, v{vFr}")
e("s_waitcnt lgkmcnt(0)")
e(f"v_cmp_gt_u32 vcc, s{sExp}, v{vFl}")
e(f"s_cbranch_vccnz L_poll")
e(f"s_branch L_pollok")

L("L_tail")
cm("last two key tiles (30, 31): q tile A first, so that its partial sums can be handed over early")
e("s_setprio 3")
stamp("tail")
e("s_waitcnt lgkmcnt(0)")
kr = kread(KF[1], 3); v30 = vread(VF[0], 2); v31 = vread(VF[1], 3)
M = qk(SA[0], KF[0], QA) + pv(OA, VF[1], SA[1]) + pv(OB, VF[1], SB[1]) + qk(SA[1], KF[1], QA)
emit_m(M, [pad() + kr[0:2], kr[2:4], v30[0:2], v30[2:4], [], ["s_waitcnt lgkmcnt(4)"] + v31[0:2], v31[2:4], []])
stamp("t2")
eseg(ex(SA[0]) + ex(SA[1]), "E'(30)")
e("s_setprio 3")
stamp("t3")
e("s_waitcnt lgkmcnt(0)")
el(jit())
xw = [f"ds_write_b128 v{vX}, v[{OA+4*i}:{OA+4*i+3}] offset:{1024*i}" for i in range(4)]
M = pv(OA, VF[0], SA[0]) + pv(OA, VF[1], SA[1]) + qk(SB[0], KF[0], QB) + qk(SB[1], KF[1], QB)
WM = CFG.get("wm", "a")
addf = [f"ds_add_u32 v{vFw}, v{vProg}"]
if WM == "a":
    emit_m(M, [[], [], [], [], ["s_nop 7", "s_nop 1"], xw[0:1], xw[1:3], xw[3:4] + addf + [f"s_add_u32 s{sExp}, s{sExp}, 1"]])
    xw2 = []
elif WM == "b":
    emit_m(M, [[], [], [], [], ["s_nop 7", "s_nop 1"], xw[0:2], xw[2:4] + addf, [f"s_add_u32 s{sExp}, s{sExp}, 1", "s_nop 1"]])
    xw2 = []
elif WM == "c":
    emit_m(M, [[], [], [], [], ["s_nop 7", "s_nop 1"], xw[0:1], xw[1:2], xw[2:3] + [f"s_add_u32 s{sExp}, s{sExp}, 1", "s_nop 1"]])
    xw2 = xw[3:4] + addf
R = SA[0]; P0 = SA[1]
def xreads():
    e(f"ds_read_b32 v{vFl}, v{vFp}")
    for i in (3, 0, 1, 2):
        e(f"ds_read_b128 v[{R+4*i}:{R+4*i+3}], v{vXr} offset:{1024*i}")
E = ex(SB[0]) + ex(SB[1])
PB = pv(OB, VF[0], SB[0]) + pv(OB, VF[1], SB[1])
stamp("t4")
e(f"s_mov_b32 s{sT+1}, 0x71800000")
e(f"s_mov_b32 s{sSo}, 0x207")
e(f"s_cmp_eq_u32 s{sHalf}, 0")
e("s_cbranch_scc0 L_lastY")
eseg(E, "E'(31), waves 0-3")
stamp("t0")
e("s_setprio 3")
e(PB[0]); el(xw2); e(PB[1]); e(PB[2]); e(PB[3])
e("s_branch L_xch_spin")
L("L_lastY")
el(jit())
cm("E'(31), waves 4-7")
if CFG["xr"] == "0": xreads()
el(pad())
e("s_setprio 0")
for i, s in enumerate(E):
    if i == E1: e(f"s_setprio {CFG['pe']}")
    if i == 10:
        e(PB[0]); el(xw2)
    if i == 18:
        e(PB[1])
        if 0 < int(CFG["xr"]) < 32: xreads()
    if i == 27: e(PB[2])
    e(s)
stamp("t0")
e("s_nop 0")
el(pad("s_nop 0"))
e(PB[3])
e(f"s_setprio {CFG['py']}")
if int(CFG["xr"]) >= 32: xreads()
e("s_waitcnt lgkmcnt(4)")
e(f"v_cmp_gt_u32 vcc, s{sExp}, v{vFl}")
e("s_cbranch_vccnz L_xch_spin")
e("s_nop 7")
L("L_xch_ok")
el(jit())
stamp("xok")
e(f"s_waitcnt lgkmcnt(3)")
def padd(r): e(f"v_pk_add_f32 v[{OB+r}:{OB+r+1}], v[{OB+r}:{OB+r+1}], v[{R+r}:{R+r+1}]")
padd(12)
padd(14)
cm("1/l (valid in lanes 32..63) -> all lanes")
e(f"v_rcp_f32 v{vT}, v{OB+12}")
e(f"s_waitcnt lgkmcnt(2)")
padd(0)
e(f"v_mov_b32 v{vT+4}, v{vT}")
padd(2)
e(f"s_waitcnt lgkmcnt(1)")
el(pad())
padd(4)
e(f"v_permlane32_swap_b32 v{vT}, v{vT+4}")
padd(6)
e(f"s_waitcnt lgkmcnt(0)")
padd(8)
padd(10)
cm("safety check of the unshifted exponentials, part 1: l in [1, 2^100]")
e(f"v_cmp_nle_f32 vcc, 1.0, v{OB+12}")
e(f"v_cmp_nge_f32 s[{sT+2}:{sT+3}], s{sT+1}, v{OB+12}")
L("L_fin")
stamp("fin")
def pmul(r): e(f"v_pk_mul_f32 v[{OB+r}:{OB+r+1}], v[{OB+r}:{OB+r+1}], v[{vT+4}:{vT+5}] op_sel_hi:[1,0]")
if CFG.get("w128"):
    for r in range(8, 16, 2): pmul(r)
    for r in range(8, 16, 2): e(f"v_cvt_pk_bf16_f32 v{P0+r//2}, v{OB+r}, v{OB+r+1}")
    cm("upper lanes spill 8 junk bytes into the next row; the second write (in order) covers them")
    e(f"ds_write_b128 v{vOw}, v[{P0+4}:{P0+7}] offset:16")
    for r in range(0, 8, 2): pmul(r)
    for r in range(0, 8, 2): e(f"v_cvt_pk_bf16_f32 v{P0+r//2}, v{OB+r}, v{OB+r+1}")
    e(f"ds_write_b128 v{vOw}, v[{P0}:{P0+3}]")
else:
    for r in range(0, 8, 2): pmul(r)
    for r in range(0, 8, 2): e(f"v_cvt_pk_bf16_f32 v{P0+r//2}, v{OB+r}, v{OB+r+1}")
    e(f"ds_write_b64 v{vOw}, v[{P0}:{P0+1}]")
    e(f"ds_write_b64 v{vOw}, v[{P0+2}:{P0+3}] offset:8")
    el(pad())
    for r in range(8, 16, 2): pmul(r)
    for r in range(8, 16, 2): e(f"v_cvt_pk_bf16_f32 v{P0+r//2}, v{OB+r}, v{OB+r+1}")
    e(f"ds_write_b64 v{vOw}, v[{P0+4}:{P0+5}] offset:16")
    e("s_mov_b32 exec_hi, 0")
    e(f"ds_write_b64 v{vOw}, v[{P0+6}:{P0+7}] offset:24")
    e("s_mov_b32 exec_hi, -1")
e(f"ds_read_b128 v[{P0+8}:{P0+11}], v{vXr}")
e(f"ds_read_b128 v[{P0+12}:{P0+15}], v{vXr} offset:1024")
stamp("stg")
e("s_setprio 0")
el(pad())
cm("part 2: every output finite")
e(f"s_or_b64 vcc, vcc, s[{sT+2}:{sT+3}]")
e(f"v_pk_add_f32 v[{vT+2}:{vT+3}], v[{OB}:{OB+1}], v[{OB+2}:{OB+3}]")
e(f"v_pk_add_f32 v[{vT+6}:{vT+7}], v[{OB+4}:{OB+5}], v[{OB+6}:{OB+7}]")
e(f"v_pk_add_f32 v[{R}:{R+1}], v[{OB+8}:{OB+9}], v[{OB+10}:{OB+11}]")
e(f"v_pk_add_f32 v[{R+2}:{R+3}], v[{OB+12}:{OB+13}], v[{OB+14}:{OB+15}]")
e(f"v_pk_add_f32 v[{vT+2}:{vT+3}], v[{vT+2}:{vT+3}], v[{vT+6}:{vT+7}]")
e(f"v_pk_add_f32 v[{R}:{R+1}], v[{R}:{R+1}], v[{R+2}:{R+3}]")
e(f"s_mov_b32 vcc_lo, 0")
e(f"v_pk_add_f32 v[{vT+2}:{vT+3}], v[{vT+2}:{vT+3}], v[{R}:{R+1}]")
e(f"s_and_b64 vcc, vcc, s[{sFast}:{sFast+1}]")
e(f"v_add_f32 v{vT+2}, v{vT+2}, v{vT+3}")
e(f"v_cmp_class_f32 s[{sT+4}:{sT+5}], v{vT+2}, s{sSo}")
el(pad("s_nop 0"))
e(f"s_and_b64 s[{sT+4}:{sT+5}], s[{sT+4}:{sT+5}], s[{sFast}:{sFast+1}]")
e(f"s_or_b64 vcc, vcc, s[{sT+4}:{sT+5}]")
e("s_cbranch_vccnz L_slow")
e("s_waitcnt lgkmcnt(1)")
e(f"buffer_store_dwordx4 v[{P0+8}:{P0+11}], v{vOl}, s[{rO}:{rO+3}], s{sQrow} offen {ST}")
e("s_mov_b32 exec_hi, 0xffff")
e("s_waitcnt lgkmcnt(0)")
e(f"buffer_store_dwordx4 v[{P0+12}:{P0+15}], v{vOl}, s[{rO}:{rO+3}], s{sQrow} offen offset:1024 {ST}")
if CFG.get("reveal"):
    e("s_memtime s[92:93]")
    e("s_waitcnt lgkmcnt(0)")
    e(f"s_and_b32 s94, s2, {int(CFG.get('rmask', 255))}")
    e(f"s_cmp_eq_u32 s94, {int(CFG.get('rwg', 133))}")
    e("s_cbranch_scc0 L_end")
    if CFG["reveal"] == "end":
        e(f"s_sub_u32 s94, s92, s{sStamp}")
        e(f"s_sub_u32 s94, s94, {int(CFG.get('roff', 24000))}")
        e(f"s_max_i32 s94, s94, 0")
    else:
        e(f"s_sub_u32 s94, s{sStamp+2}, s{sStamp}")
    e("s_lshl_b32 s94, s94, 4")
    L("L_rev")
    e("s_memtime s[96:97]")
    e("s_waitcnt lgkmcnt(0)")
    e("s_sub_u32 s96, s96, s92")
    e("s_cmp_lt_u32 s96, s94")
    e("s_cbranch_scc1 L_rev")
    e("s_branch L_end")
if CFG["stamp"]:
    stamp("st")
    e("s_waitcnt vmcnt(0)")
    stamp("end")
    e("s_memrealtime s[74:75]")
    e("s_load_dwordx2 s[76:77], s[0:1], 40")
    e("s_waitcnt lgkmcnt(0)")
    e("s_mov_b32 s78, 0x100000")
    e("s_mov_b32 s79, 0x00020000")
    e("s_mov_b64 exec, 1")
    e(f"s_lshl_b32 s82, s2, 3")
    e(f"s_add_u32 s82, s82, s{sW}")
    e(f"s_mul_i32 s82, s82, 48")
    e("v_mov_b32 v3, s82")
    for k in range(8):
        e(f"v_mov_b32 v{4+k}, s{sStamp+2*k}")
    e("v_mov_b32 v12, s72")
    e("v_mov_b32 v13, s74")
    e("s_getreg_b32 s80, hwreg(HW_REG_XCC_ID)")
    e("v_mov_b32 v14, s80")
    e("buffer_store_dwordx4 v[4:7], v3, s[76:79], 0 offen")
    e("buffer_store_dwordx4 v[8:11], v3, s[76:79], 0 offen offset:16")
    e("buffer_store_dwordx4 v[12:15], v3, s[76:79], 0 offen offset:32")
L("L_end")
e("s_endpgm")
cm("wait for the partner's partial sums")
L("L_xch_spin")
e(f"ds_read_b32 v{vFl}, v{vFp}")
e("s_waitcnt lgkmcnt(0)")
e(f"v_cmp_gt_u32 vcc, s{sExp}, v{vFl}")
e("s_cbranch_vccnz L_xch_spin")
xreads()
e(f"s_setprio {CFG['px']}")
e("s_nop 0")
el(pad("s_nop 0"))
e("s_branch L_xch_ok")

cm("fallback: exact online-max softmax for this wave's 32 queries (tile B), all 2048 keys")
L("L_slow")
e("s_waitcnt lgkmcnt(0)")
e(f"s_mov_b64 s[{sFast}:{sFast+1}], 0")
QR = QA; S = SA[0]; vM = vT; vMn = vT + 1; vAl = vT + 2; vKo = vT + 4; vVo = vT + 5; vVa = vT + 6
e(f"buffer_load_dwordx4 v[{QR}:{QR+3}], v{vQoff}, s[{rQ}:{rQ+3}], s{sQrow} offen")
e(f"buffer_load_dwordx4 v[{QR+4}:{QR+7}], v{vQoff}, s[{rQ}:{rQ+3}], s{sQrow} offen offset:16")
e(f"v_add_u32 v{vKo}, s{sHead}, v{vQoff}")
e(f"v_add_u32 v{vVo}, s{sHead}, v{vOl}")
e(f"v_add_u32 v{vVa}, s{sXr}, v{vSl0}")
e(f"v_cmp_eq_u32 vcc, 1, v{vOne}")
e(f"s_mov_b32 m0, s{sXr}")
e(f"v_mov_b32 v{vM}, 0xff7fffff")
e(f"v_cndmask_b32 v{vVa}, v{vSl1}, v{vVa}, vcc")
for r in range(16): e(f"v_mov_b32 v{OB+r}, 0")
e(f"v_cmp_eq_u32 vcc, 0, v{vH}")
e(f"s_mov_b32 s{sStg}, 0")
e("s_waitcnt vmcnt(0)")
e(f"v_cndmask_b32 v{QR}, 0, v{QR}, vcc")
e(f"v_cndmask_b32 v{QR+1}, 0, v{QR+1}, vcc")
L("L_slow_loop")
for i in range(4):
    e(f"buffer_load_dwordx2 v[{KF[0]+2*i}:{KF[0]+2*i+1}], v{vKo}, s[{rK}:{rK+3}], s{sStg} offen offset:{8*i}")
e(f"buffer_load_dwordx4 v{vVo}, s[{rV}:{rV+3}], s{sStg} offen lds")
e(f"buffer_load_dwordx4 v{vVo}, s[{rV}:{rV+3}], s{sStg} offen offset:1024 lds")
e("s_waitcnt vmcnt(0)")
el(vread(VF[0], 0, vVa))
q = qk(S, KF[0], QR)
e(q[0]); e(q[1])
e("s_nop 15")
e(f"v_max3_f32 v{vMn}, v{S}, v{S+1}, v{vM}")
for r in range(2, 16, 2):
    e(f"v_max3_f32 v{vMn}, v{S+r}, v{S+r+1}, v{vMn}")
e(f"v_mov_b32 v{vAl}, v{vMn}")
e("s_nop 1")
e(f"v_permlane32_swap_b32 v{vMn}, v{vAl}")
e("s_nop 1")
e(f"v_max_f32 v{vMn}, v{vMn}, v{vAl}")
e(f"v_sub_f32 v{vAl}, v{vM}, v{vMn}")
e(f"v_mul_f32 v{vAl}, s{sC}, v{vAl}")
e(f"v_exp_f32 v{vAl}, v{vAl}")
e(f"v_mov_b32 v{vM}, v{vMn}")
for r in range(16):
    e(f"v_sub_f32 v{S+r}, v{S+r}, v{vM}")
    e(f"v_mul_f32 v{S+r}, s{sC}, v{S+r}")
    e(f"v_exp_f32 v{S+r}, v{S+r}")
for r in range(16):
    e(f"v_mul_f32 v{OB+r}, v{vAl}, v{OB+r}")
e("s_waitcnt lgkmcnt(0)")
e("s_nop 1")
P = pv(OB, VF[0], S)
e(P[0]); e(P[1])
e("s_nop 15")
e(f"s_add_u32 s{sStg}, s{sStg}, 1792")
e(f"s_cmp_lt_u32 s{sStg}, {HEADB}")
e("s_cbranch_scc1 L_slow_loop")
e(f"v_rcp_f32 v{vT}, v{OB+12}")
e("s_nop 0")
e(f"v_mov_b32 v{vT+4}, v{vT}")
e("s_nop 1")
e(f"v_permlane32_swap_b32 v{vT}, v{vT+4}")
e("s_nop 1")
e("s_branch L_fin")

out.append('.section .rodata,"a"')
out.append(".p2align 6")
out.append(f".amdhsa_kernel {NAME}_kernel")
out.append(f"  .amdhsa_next_free_vgpr {NVGPR}")
out.append("  .amdhsa_next_free_sgpr 102")
out.append(f"  .amdhsa_accum_offset {NVGPR}")
out.append("  .amdhsa_group_segment_fixed_size 0")
out.append("  .amdhsa_kernarg_size 48")
out.append("  .amdhsa_user_sgpr_count 2")
out.append("  .amdhsa_user_sgpr_kernarg_segment_ptr 1")
out.append("  .amdhsa_system_sgpr_workgroup_id_x 1")
out.append(".end_amdhsa_kernel")
open(sys.argv[1], "w").write("\n".join(out) + "\n")
```
